```python
import torch

def _softmax(x, axis=-1):
    return torch.softmax(x, dim=axis)

def _gelu(x):
    return torch.nn.functional.gelu(x, approximate='tanh')

def _silu(x):
    return torch.nn.functional.silu(x)

def _sigmoid(x):
    return torch.sigmoid(x)

def _layernorm(x, axis=-1, eps=1e-05):
    m = x.mean(dim=axis, keepdim=True)
    v = x.var(dim=axis, keepdim=True, unbiased=False)
    return (x - m) / torch.sqrt(v + eps)

def _scatter_add(tgt, idx, src, axis=0):
    return tgt.clone().index_add_(axis, idx, src)

def _segment_sum(src, seg, n):
    out = torch.zeros((n,) + src.shape[1:], dtype=src.dtype)
    return out.index_add_(0, seg, src)

def _pad(x, pw):
    flat = tuple((v for pair in reversed(pw) for v in pair))
    return torch.nn.functional.pad(x, flat)
kernel_name = 'adaLN_cond__sliding_block_cached__dense_activation_gelu__decode'

def setup_inputs():

    _w = lambda a: (lambda t: t.to(torch.bfloat16) if t.is_floating_point() else t)(torch.as_tensor(a))

    def _A_setup():
        B, Sq, D = (4, 1, 640)
        Hq, Hkv, Sk, Dh = (32, 32, 8192, 128)
        assert Hq % Hkv == 0, (Hq, Hkv)
        return {'x': _w((lambda *s: torch.randn(*s, dtype=torch.bfloat16) * 0.1)(B, Sq, D)), 'k_cache': _w((lambda *s: torch.randn(*s, dtype=torch.bfloat16) * 0.8)(B, Hkv, Sk, Dh)), 'v_cache': _w((lambda *s: torch.randn(*s, dtype=torch.bfloat16) * 3.2)(B, Hkv, Sk, Dh)), 'wq': _w((lambda *s: torch.randn(*s, dtype=torch.bfloat16) * 0.8)(D, Hq * Dh) * D ** (-0.5)), 'wo': _w((lambda *s: torch.randn(*s, dtype=torch.bfloat16) * 3.2)(Hq * Dh, D) * (Hq * Dh) ** (-0.5))}
    _A_in = _A_setup()

    def _B_setup():
        B, S, D, F = (4, 1, 640, 1728)
        return {'x': _w((lambda *s: torch.randn(*s, dtype=torch.bfloat16) * 0.1)(B, S, D)), 'w1': _w((lambda *s: torch.randn(*s, dtype=torch.bfloat16) * 3.2)(D, F) * D ** (-0.5)), 'b1': _w((lambda *s: torch.randn(*s, dtype=torch.bfloat16) * 3.2)(F) * 0.01), 'w2': _w((lambda *s: torch.randn(*s, dtype=torch.bfloat16) * 3.2)(F, D) * F ** (-0.5)), 'b2': _w((lambda *s: torch.randn(*s, dtype=torch.bfloat16) * 3.2)(D) * 0.01)}
    _B_in = _B_setup()
    return {'A_x': _A_in['x'], 'A_k_cache': _A_in['k_cache'], 'A_v_cache': _A_in['v_cache'], 'A_wq': _A_in['wq'], 'A_wo': _A_in['wo'], 'B_x': _B_in['x'], 'B_w1': _B_in['w1'], 'B_b1': _B_in['b1'], 'B_w2': _B_in['w2'], 'B_b2': _B_in['b2'], 'c': _w((lambda *s: torch.randn(*s, dtype=torch.bfloat16) * 0.1)(4, 640) * 8.0), 'w_mod': _w((lambda *s: torch.randn(*s, dtype=torch.bfloat16) * 0.1)(640, 6 * 640) * 640 ** (-0.5) * 8.0)}

def reference(A_x, A_k_cache, A_v_cache, A_wq, A_wo, B_x, B_w1, B_b1, B_w2, B_b2, c, w_mod):

    def _A_ref(x, k_cache, v_cache, wq, wo):
        B, Sq, D = x.shape
        Hq, Dh = (32, 128)
        Hkv, Sk = (k_cache.shape[1], k_cache.shape[2])
        W = min(4096, max(256, Sk // 4))
        rep = Hq // Hkv
        q = (lambda x, *d: x.permute(*d))((x @ wq).reshape(B, Sq, Hq, Dh), 0, 2, 1, 3)
        k = (lambda x, n, axis: torch.repeat_interleave(x, n, dim=axis))(k_cache[:, :, Sk - W:, :], rep, axis=1)
        v = (lambda x, n, axis: torch.repeat_interleave(x, n, dim=axis))(v_cache[:, :, Sk - W:, :], rep, axis=1)
        scores = torch.einsum('bhqd,bhkd->bhqk', q, k) * Dh ** (-0.5)
        p = _softmax(scores, axis=-1)
        o = torch.einsum('bhqk,bhkd->bhqd', p, v)
        return (lambda x, *d: x.permute(*d))(o, 0, 2, 1, 3).reshape(B, Sq, Hq * Dh) @ wo

    def _B_ref(x, w1, b1, w2, b2):
        h = torch.einsum('bsd,df->bsf', x, w1) + b1
        h = _gelu(h)
        return torch.einsum('bsf,fd->bsd', h, w2) + b2
    x = A_x
    mod = (_silu(c) @ w_mod).reshape(c.shape[0], 6, 1, -1)
    sa, ca, ga, sb, cb, gb = (mod[:, 0].clone(), mod[:, 1].clone(), mod[:, 2].clone(), mod[:, 3].clone(), mod[:, 4].clone(), mod[:, 5].clone())
    h = _layernorm(x, axis=-1) * (1 + ca) + sa
    x = x + ga * _A_ref(h, A_k_cache, A_v_cache, A_wq, A_wo)
    h = _layernorm(x, axis=-1) * (1 + cb) + sb
    x = x + gb * _B_ref(h, B_w1, B_b1, B_w2, B_b2)
    return x
```

```python
import re
TRANS = ("v_exp_f32", "v_log_f32", "v_rcp_f32", "v_rsq_f32", "v_sqrt_f32", "v_sin_f32", "v_cos_f32", "v_rcp_iflag_f32")
def regs_of(tok):
    tok = tok.strip()
    tok = re.sub(r"^-|^abs\(|\)$|^\|", "", tok).strip("|")
    m = re.fullmatch(r"([vsa])\[(\d+):(\d+)\]", tok)
    if m: return {(m.group(1), i) for i in range(int(m.group(2)), int(m.group(3)) + 1)}
    m = re.fullmatch(r"([vsa])(\d+)", tok)
    if m: return {(m.group(1), int(m.group(2)))}
    if tok == "vcc": return {("s", "vcc")}
    if tok in ("vcc_lo", "vcc_hi"): return {("s", "vcc")}
    if tok == "m0": return {("s", "m0")}
    if tok in ("exec", "exec_lo", "exec_hi"): return {("s", "exec")}
    return set()
class Ins:
    def __init__(s, text):
        s.text = text
        t = text.split(";")[0].strip()
        s.op = t.split()[0]
        rest = t[len(s.op):].strip()
        ops = []; depth = 0; cur = ""
        for ch in rest:
            if ch == "[": depth += 1
            if ch == "]": depth -= 1
            if ch == "," and depth == 0: ops.append(cur.strip()); cur = ""
            else: cur += ch
        if cur.strip(): ops.append(cur.strip())
        mods = ""
        if ops:
            parts = ops[-1].split(None, 1)
            ops[-1] = parts[0]
            mods = parts[1] if len(parts) > 1 else ""
        s.ops = ops; s.mods = mods
        op = s.op
        s.valu = op.startswith("v_") and not op.startswith("v_mfma")
        s.mfma = op.startswith("v_mfma")
        s.dot = op.startswith("v_dot")
        s.trans = any(op.startswith(x) for x in TRANS)
        s.dpp = "_dpp" in op or any(k in mods for k in ("row_", "quad_perm", "wave_"))
        s.perm = op.startswith("v_permlane")
        s.vmem = op.startswith(("buffer_", "global_", "flat_"))
        s.ds = op.startswith("ds_")
        s.salu = op.startswith("s_")
        s.rdlane = op.startswith(("v_readfirstlane", "v_readlane"))
        s.ldsdma = s.vmem and ("lds" in mods.split() or "_lds_" in op)
        W = set(); R = set(); s.srcC = set(); s.srcAB = set(); s.dppsrc = set(); s.stdata = set()
        r = [regs_of(o) for o in ops]
        if s.mfma:
            W = r[0]; s.srcAB = r[1] | r[2]; s.srcC = r[3]; R = s.srcAB | s.srcC
            s.passes = 4 if "16x16x32" in op or "16x16x16" in op else 8
        elif s.valu:
            if op == "v_nop": pass
            elif s.perm: W = r[0] | r[1]; R = r[0] | r[1]
            else:
                W = set(r[0]); k = 1
                if op.startswith(("v_add_co", "v_sub_co", "v_addc_co", "v_subb_co", "v_mad_u64")): W |= r[1]; k = 2
                for x in r[k:]: R |= x
                if op.startswith(("v_fmac", "v_dot2c", "v_writelane")) : R |= r[0]
                if op.startswith("v_cmpx"): W |= {("s", "exec")}
                if op.startswith("v_cndmask") and len(ops) == 3: R |= {("s", "vcc")}
                if s.dpp: s.dppsrc = r[1]
        elif s.vmem:
            isst = "store" in op; isat = "atomic" in op
            if s.ldsdma:
                for x in r: R |= x
                R |= {("s", "m0")}
            elif op.startswith("buffer_"):
                if op in ("buffer_wbl2", "buffer_inv"): pass
                else:
                    if isst or isat: R |= r[0]; s.stdata = r[0]
                    if not isst and (not isat or "sc0" in mods.split()): W |= r[0]
                    for x in r[1:]: R |= x
            else:
                if isst: R = r[0] | r[1] | r[2]; s.stdata = r[1]
                elif isat:
                    if len(ops) == 4: W = r[0]; R = r[1] | r[2] | r[3]
                    else: R = r[0] | r[1] | r[2]
                else:
                    W = r[0]
                    for x in r[1:]: R |= x
            if len(s.stdata) < 3: s.stdata = set()
        elif s.ds:
            if op.startswith(("ds_read", "ds_bpermute", "ds_permute", "ds_swizzle")) or "_rtn_" in op:
                W = r[0]
                for x in r[1:]: R |= x
            else:
                for x in r: R |= x
        elif s.salu:
            if op.startswith(("s_cmp", "s_cbranch", "s_branch", "s_waitcnt", "s_nop", "s_barrier", "s_sleep", "s_setprio", "s_endpgm", "s_bitcmp")):
                for x in r: R |= x
            else:
                if r: W = set(r[0])
                for x in r[1:]: R |= x
                if "saveexec" in op: W |= {("s", "exec")}
        s.W = W; s.R = R
        s.slots = 1
        if op == "s_nop": s.slots = int(ops[0], 0) + 1
def need(p, c):
    n = 0
    vW = {x for x in p.W if x[0] in "va"}; sW = {x for x in p.W if x[0] == "s"}
    if p.valu:
        if c.dpp and vW & c.dppsrc: n = max(n, 2)
        if c.perm and vW & c.R: n = max(n, 2)
        if c.mfma and vW & c.R: n = max(n, 3 if p.dot else 2)
        if c.rdlane and vW & c.R: n = max(n, 1)
        if p.trans and (c.valu or c.mfma or c.ds or c.vmem) and not c.trans and vW & c.R: n = max(n, 1)
        if p.trans and c.trans and vW & c.R: n = max(n, 1)
        if p.dot and (vW & (c.R | c.W)):
            same_c = (c.op == p.op) and not (vW & set().union(*[regs_of(o) for o in c.ops[1:3]]))
            if not same_c: n = max(n, 3)
        if sW:
            if c.vmem and sW & c.R: n = max(n, 5)
            if c.valu and (sW - {("s", "exec")}) & c.R: n = max(n, 4 if c.op.startswith(("v_readlane", "v_writelane")) else 2)
            if ("s", "exec") in sW:
                if c.dpp: n = max(n, 5)
                if c.mfma or c.perm or c.rdlane: n = max(n, 4)
            if c.salu and sW & c.R and not c.op.startswith("s_cbranch"): n = max(n, 1)
        if "sdwa" in p.op and "dst_sel:DWORD" not in p.mods and vW & (c.R | c.W): n = max(n, 1)
    if p.mfma:
        k = {4: 0, 8: 1}[p.passes]
        if c.mfma:
            if p.W & c.srcAB: n = max(n, (8, 12)[k])
            if p.W & c.srcC and not (p.W == c.srcC and p.passes == c.passes): n = max(n, (6, 10)[k])
            if p.W & c.W and not (p.W & c.srcC): n = max(n, (6, 10)[k])
        elif (c.valu or c.vmem or c.ds) and p.W & (c.R | c.W): n = max(n, (8, 12)[k])
        if c.valu and p.srcC & c.W: n = max(n, (3, 7)[k])
    if p.salu and ("s", "m0") in p.W and c.ldsdma: n = max(n, 1)
    if p.stdata and p.stdata & c.W: n = max(n, 2)
    return n
class Asm:
    def __init__(s):
        s.lines = []; s.hist = []; s.nops = 0
    def raw(s, t): s.lines.append(t)
    def label(s, name):
        s.lines.append(name + ":")
    def fence(s):
        s.hist = []
    def __call__(s, text):
        for t in text.split("\n"):
            t = t.strip()
            if not t: continue
            if t.startswith(";"): s.lines.append("    " + t); continue
            if t.endswith(":"): s.lines.append(t); continue
            c = Ins(t)
            pad = 0; dist = 0
            for p in reversed(s.hist):
                pad = max(pad, need(p, c) - dist)
                dist += p.slots
                if dist > 20: break
            while pad > 0:
                k = min(pad, 16)
                n = Ins(f"s_nop {k-1}")
                s.lines.append(f"    s_nop {k-1}"); s.hist.append(n); s.nops += k; pad -= k
            s.lines.append("    " + t); s.hist.append(c)
            if c.op in ("s_branch", "s_endpgm"): s.hist = []
    def text(s): return "\n".join(s.lines) + "\n"
```

```python
import sys, math
from asmlib import Asm
NAME = "adaLN_cond__sliding_block_cached__dense_activation_gelu__decode"
HEADER = open(__file__.rsplit("/", 1)[0] + "/header.txt").read() if "/" in __file__ else open("header.txt").read()

WS_H, WS_Q, WS_MR, WS_O, WS_LAM, WS_P, WS_H1, WS_END = 0x0, 0x2000, 0xA000, 0x10000, 0x20000, 0x22000, 0x2C000, 0x30000
L_WMOD, L_WQ, L_WT = 0, 20480, 40960
L_QV = 98304; L_ML = L_QV + 256; L_ZERO = L_QV + 512
L_RED = L_QV + 1024
L_TR = L_RED + 8192
L_H2 = L_TR + 9216
L_RED2 = L_H2 + 5376
L_END = L_RED2 + 8192
f2u = lambda f: __import__("struct").unpack("<I", __import__("struct").pack("<f", f))[0]
FULL = "row_mask:0xf bank_mask:0xf"

def gen(diag=False, D=0, NX=5, wflag="nt", spin=60000, outflag=""):
    A = Asm()
    uid = [0]
    def newlabel(p):
        uid[0] += 1; return f"L_{p}{uid[0]}"
    def stamp(i):
        if diag:
            A(f"s_memrealtime s[{64+2*i}:{65+2*i}]"); A("s_waitcnt lgkmcnt(0)")
    def maxtree(dst, regs):
        out = []
        regs = list(regs)
        if len(regs) == 1: return [f"v_mov_b32 v{dst}, v{regs[0]}"]
        if len(regs) == 2: return [f"v_max_u32 v{dst}, v{regs[0]}, v{regs[1]}"]
        out.append(f"v_max3_u32 v{dst}, v{regs[0]}, v{regs[1]}, v{regs[2]}"); regs = regs[3:]
        while regs:
            if len(regs) >= 2: out.append(f"v_max3_u32 v{dst}, v{dst}, v{regs[0]}, v{regs[1]}"); regs = regs[2:]
            else: out.append(f"v_max_u32 v{dst}, v{dst}, v{regs[0]}"); regs = regs[1:]
        return out
    def poll(loads, regs, tmp, wait="vmcnt(0)", sleep=0, extra=None, cmp=None):
        lp = newlabel("poll"); dn = newlabel("done")
        A("s_mov_b32 s35, 0")
        A.label(lp)
        for l in loads: A(l)
        A(f"s_add_u32 s35, s35, 1")
        A(f"s_waitcnt {wait}")
        chk = maxtree(tmp, regs) if cmp is None else []
        if extra:
            per = max(1, math.ceil(len(chk) / len(extra)))
            for e in extra:
                A(e)
                for c in chk[:per]: A(c)
                chk = chk[per:]
        for c in chk: A(c)
        A(cmp if cmp else f"v_cmp_eq_u32 vcc, -1, v{tmp}")
        A(f"s_cbranch_vccz {dn}")
        snap = list(A.hist)
        if sleep: A(f"s_sleep {sleep}")
        A(f"s_cmp_lt_u32 s35, {spin}")
        if extra: A("s_nop 7")
        A(f"s_cbranch_scc1 {lp}")
        A.label(dn)
        A.hist = snap
    def allred_rows(op, v, t):
        for sw in ("v_permlane16_swap_b32", "v_permlane32_swap_b32"):
            for x, y in zip(v, t): A(f"v_mov_b32 v{y}, v{x}")
            for x, y in zip(v, t): A(f"{sw} v{x}, v{y}")
            for x, y in zip(v, t): A(f"{op} v{x}, v{x}, v{y}")
    def srd(r, lo, hi, n):
        A(f"s_mov_b32 s{r}, s{lo}"); A(f"s_and_b32 s{r+1}, s{hi}, 0xffff"); A(f"s_mov_b32 s{r+2}, {n}"); A(f"s_mov_b32 s{r+3}, 0x20000")
    def diagmask(m0, t0, t1):
        A(f"v_and_b32 v{t0}, 1, v0"); A(f"v_lshlrev_b32 v{t0}, 4, v{t0}")
        A(f"v_mov_b32 v{t1}, 0xffff"); A(f"v_lshlrev_b32 v{t0}, v{t0}, v{t1}")
        A(f"v_bfe_u32 v{t1}, v0, 1, 2")
        for m in range(4):
            A(f"v_cmp_eq_u32 vcc, {m}, v{t1}"); A(f"v_cndmask_b32 v{m0+m}, 0, v{t0}, vcc")

    A.raw(HEADER.rstrip())
    A.raw(f"; @launch grid=(256,1,1) block=(512,1,1) lds={L_END}")
    A.raw('.amdgcn_target "amdgcn-amd-amdhsa--gfx950"'); A.raw(".text")
    A.raw(f".globl {NAME}_kernel"); A.raw(".p2align 8"); A.raw(f".type {NAME}_kernel,@function")
    A.label(f"{NAME}_kernel")
    A("s_cmp_ge_u32 s2, 256"); A("s_cbranch_scc1 L_exit")
    A("s_load_dwordx16 s[4:19], s[0:1], 0")
    A("s_load_dwordx8 s[20:27], s[0:1], 64")
    A("s_load_dwordx4 s[28:31], s[0:1], 96")
    A("s_load_dwordx2 s[32:33], s[0:1], 112")
    if diag:
        for i in range(66, 96): A(f"s_mov_b32 s{i}, 0")
        A("s_memrealtime s[64:65]")
    A("v_lshrrev_b32 v1, 6, v0"); A("v_and_b32 v0, 63, v0"); A("v_readfirstlane_b32 s3, v1")
    A("s_and_b32 s60, s2, 7"); A("s_lshr_b32 s61, s2, 3")
    A("s_cmp_eq_u32 s3, 0"); A("s_cbranch_scc1 L_helper")
    KS = lambda i: 16 + 16 * i
    VX = lambda i: 176 + 16 * i
    VS = lambda i: VX(i) if i < NX else KS(i - NX + 1)
    assert VX(NX) <= 256
    A("s_and_b32 s34, s2, 127"); A("s_lshl_b32 s34, s34, 21"); A("s_lshr_b32 s35, s2, 7"); A("s_lshl_b32 s35, s35, 18")
    A("s_add_u32 s34, s34, s35"); A(f"s_add_u32 s34, s34, {6144*256}")
    A("s_sub_u32 s35, s3, 1"); A("s_lshl_b32 s35, s35, 12")
    A("v_lshl_add_u32 v1, v0, 4, s35")
    A("s_mov_b32 s38, 0x40000"); A("s_mov_b32 s39, 0x20000"); A("s_mov_b32 s42, 0x40000"); A("s_mov_b32 s43, 0x20000")
    A("s_waitcnt lgkmcnt(0)")
    A("s_add_u32 s36, s6, s34"); A("s_addc_u32 s37, s7, 0"); A("s_add_u32 s40, s8, s34"); A("s_addc_u32 s41, s9, 0")
    nissued = [0]
    def chunk(srdr, i, reg, throttle):
        A(f"s_mov_b32 s34, {i*28672}")
        for k in range(4):
            if throttle and D and nissued[0] >= D: A(f"s_waitcnt vmcnt({D-1})")
            A(f"buffer_load_dwordx4 v[{reg+4*k}:{reg+4*k+3}], v1, {srdr}, s34 offen offset:{1024*k} nt")
            nissued[0] += 1
    for i in range(10):
        chunk("s[36:39]", i, KS(i), True)
        if i == 0: A("s_barrier")
    for i in range(NX): chunk("s[40:43]", i, VS(i), True)
    stamp(1)
    srd(44, 32, 33, WS_END)
    Q = 4
    A(f"v_and_b32 v2, 15, v0"); A(f"v_lshlrev_b32 v2, 4, v2"); A(f"v_add_u32 v2, {L_QV}, v2")
    poll([f"ds_read_b128 v[{Q}:{Q+3}], v2"], range(Q, Q + 4), 3, wait="lgkmcnt(0)", sleep=2)
    stamp(2)
    S = [12, 13] + [KS(0) + k for k in range(16)] + [14, 15]
    P = [8, 9, 10, 11]
    pend = []
    late = 0
    for i in range(10):
        A(f"s_waitcnt vmcnt({40 + 4*NX - 4*(i+1) + 4*late})")
        for d in range(4):
            for k in range(4):
                r = KS(i) + 4 * k + d
                if d == 0: A(f"v_dot2_f32_bf16 v{P[k]}, v{r}, v{Q}, 0")
                else: A(f"v_dot2c_f32_bf16 v{P[k]}, v{r}, v{Q+d}")
            for e in pend[:2]: A(e)
            pend = pend[2:]
        if i >= 1 and NX + late < 10:
            assert VS(NX + late) == KS(i)
            chunk("s[40:43]", NX + late, KS(i), False); late += 1
        a, b = S[2*i], S[2*i+1]
        A(f"v_add_f32_dpp v{a}, v{P[0]}, v{P[0]} row_ror:8 row_mask:0xf bank_mask:0x3")
        A(f"v_add_f32_dpp v{a}, v{P[1]}, v{P[1]} row_ror:8 row_mask:0xf bank_mask:0xc")
        A(f"v_add_f32_dpp v{b}, v{P[2]}, v{P[2]} row_ror:8 row_mask:0xf bank_mask:0x3")
        A(f"v_add_f32_dpp v{b}, v{P[3]}, v{P[3]} row_ror:8 row_mask:0xf bank_mask:0xc")
        pend = []
        for pat in ("row_half_mirror", "quad_perm:[1,0,3,2]", "quad_perm:[2,3,0,1]"):
            pend += [f"v_add_f32_dpp v{a}, v{a}, v{a} {pat} {FULL}", f"v_add_f32_dpp v{b}, v{b}, v{b} {pat} {FULL}"]
    for e in pend: A(e)
    assert NX + late == 10
    A("s_cmp_eq_u32 s3, 1"); A("s_cbranch_scc1 L_nomask")
    A(f"v_mov_b32 v{S[18]}, {hex(f2u(-1e38))}"); A(f"v_mov_b32 v{S[19]}, {hex(f2u(-1e38))}")
    A.label("L_nomask")
    T = KS(9)
    A(f"v_max3_f32 v8, v{S[0]}, v{S[1]}, v{S[2]}")
    for k in range(3, 19, 2): A(f"v_max3_f32 v8, v8, v{S[k]}, v{S[k+1]}")
    A(f"v_max_f32 v8, v8, v{S[19]}")
    MK = T; ACC0 = T + 4; ACC1 = T + 8; B0 = KS(8)
    A(f"v_max_f32_dpp v8, v8, v8 row_ror:8 {FULL}")
    allred_rows("v_max_f32", [8], [9])
    A(f"s_mov_b32 s34, {hex(f2u(math.log2(math.e) / math.sqrt(128)))}")
    A("v_mul_f32 v8, s34, v8")
    for k in range(20): A(f"v_fma_f32 v{S[k]}, v{S[k]}, s34, -v8")
    for k in range(20): A(f"v_exp_f32 v{S[k]}, v{S[k]}")
    A(f"v_add_f32 v9, v{S[0]}, v{S[1]}")
    for k in range(2, 20): A(f"v_add_f32 v9, v9, v{S[k]}")
    diagmask(MK, 10, 11)
    A(f"v_add_f32_dpp v9, v9, v9 row_ror:8 {FULL}")
    allred_rows("v_add_f32", [9], [10])
    A("s_lshl_b32 s34, s3, 3"); A(f"s_add_u32 s34, s34, {L_ML - 8}"); A("v_mov_b32 v10, s34")
    A("s_mov_b64 exec, 1"); A("ds_write_b64 v10, v[8:9]"); A("s_mov_b64 exec, -1")
    stamp(3)
    A("s_lshl_b32 s34, s3, 10"); A(f"s_add_u32 s34, s34, {L_RED - 1024}"); A("v_lshl_add_u32 v2, v0, 4, s34")
    for t in range(20):
        B = B0 + 4 * (t & 1)
        A(f"v_cvt_pk_bf16_f32 v10, v{S[t]}, v{S[t]}")
        for m in range(4): A(f"v_and_b32 v{B+m}, v10, v{MK+m}")
        A(f"s_waitcnt vmcnt({40 - 2*(t+1)})")
        r = VS(t >> 1) + 8 * (t & 1)
        c0 = f"v[{ACC0}:{ACC0+3}]" if t else "0"; c1 = f"v[{ACC1}:{ACC1+3}]" if t else "0"
        A(f"v_mfma_f32_16x16x32_bf16 v[{ACC0}:{ACC0+3}], v[{r}:{r+3}], v[{B}:{B+3}], {c0}")
        A(f"v_mfma_f32_16x16x32_bf16 v[{ACC1}:{ACC1+3}], v[{r+4}:{r+7}], v[{B}:{B+3}], {c1}")
    for k in range(4): A(f"v_mov_b32_dpp v{ACC0+k}, v{ACC1+k} quad_perm:[0,1,2,3] row_mask:0xf bank_mask:0xc")
    A(f"ds_write_b128 v2, v[{ACC0}:{ACC0+3}]")
    A("s_waitcnt lgkmcnt(0)")
    stamp(4)
    A("s_barrier")
    A("s_branch L_tail")
    A.label("L_helper")
    A("s_setprio 3")
    A(f"v_lshlrev_b32 v1, 2, v0"); A(f"v_add_u32 v1, {L_QV}, v1"); A("v_mov_b32 v2, -1"); A("v_mov_b32 v3, 0")
    A("v_cmp_eq_u32 vcc, 14, v0"); A(f"v_mov_b32 v5, {hex(f2u(-1e38))}"); A("v_cndmask_b32 v4, v2, v5, vcc")
    A("v_cmp_eq_u32 vcc, 15, v0"); A("v_cndmask_b32 v4, v4, v3, vcc")
    A("ds_write_b32 v1, v2"); A("ds_write_b32 v1, v4 offset:256"); A("ds_write_b32 v1, v3 offset:512")
    A("v_bfe_u32 v5, v0, 3, 2"); A("v_lshlrev_b32 v10, 3, v5"); A("v_lshrrev_b32 v5, 5, v0"); A("v_lshl_add_u32 v10, v5, 2, v10")
    A("v_bfe_u32 v5, v0, 1, 2"); A("v_add_u32 v10, v10, v5")
    A("v_and_b32 v11, 1, v0")
    A("v_and_b32 v12, 3, v0"); A("v_bfe_u32 v13, v0, 2, 2"); A("v_lshrrev_b32 v14, 4, v0")
    A("v_lshlrev_b32 v15, 3, v0")
    A("s_waitcnt lgkmcnt(0)")
    A("s_barrier")
    srd(44, 32, 33, WS_END)
    A("s_movk_i32 s48, 0x1000")
    A("s_lshr_b32 s34, s61, 3"); A("s_lshl_b32 s34, s34, 3"); A("s_add_u32 s34, s34, s60"); A("s_lshl_b32 s34, s34, 8")
    A("s_and_b32 s35, s61, 7"); A("s_lshl_b32 s35, s35, 5"); A("s_add_u32 s49, s34, s35")
    A("v_lshlrev_b32 v16, 13, v10"); A("v_lshl_add_u32 v16, v11, 4, v16"); A("v_add_u32 v16, s49, v16")
    A("s_cmp_ge_u32 s61, 16"); A("s_cbranch_scc1 L_r_rest1")
    A("s_cmp_lt_u32 s61, 8"); A("s_cbranch_scc1 L_r_h")
    A("s_cmp_lt_u32 s60, 2"); A("s_cbranch_scc1 L_r_h")
    A("s_cmp_ge_u32 s60, 6"); A("s_cbranch_scc1 L_clear")
    A("s_lshl_b32 s34, s60, 1"); A("s_lshr_b32 s35, s61, 2"); A("s_add_u32 s34, s34, s35"); A("s_add_u32 s34, s34, 26")
    A("s_branch L_r_rest2")
    A.label("L_r_rest1")
    A("s_lshr_b32 s34, s61, 2"); A("s_sub_u32 s34, s34, 4"); A("s_lshl_b32 s34, s34, 3"); A("s_add_u32 s34, s34, s60")
    A.label("L_r_rest2")
    A("s_lshl_b32 s34, s34, 7"); A("s_and_b32 s35, s61, 3"); A("s_lshl_b32 s35, s35, 5"); A("s_add_u32 s51, s34, s35")
    A("s_add_u32 s53, s51, 2560"); A("s_mov_b32 s52, 16"); A("s_mov_b32 s50, 1"); A("s_mov_b32 s54, 0")
    A("s_branch L_p1")
    A.label("L_r_h")
    A("s_and_b32 s34, s61, 8"); A("s_add_u32 s34, s34, s60"); A("s_lshl_b32 s34, s34, 7")
    A("s_and_b32 s35, s61, 7"); A("s_lshl_b32 s35, s35, 4"); A("s_add_u32 s51, s34, s35")
    A("s_mov_b32 s53, s51"); A("s_movk_i32 s52, 1280"); A("s_mov_b32 s50, 0"); A("s_mov_b32 s54, s51")
    A.label("L_p1")
    A("v_mul_u32_u24 v17, 1280, v12"); A("v_lshl_add_u32 v18, v13, 6, v17"); A("v_lshl_add_u32 v18, v14, 4, v18")
    C0 = 32; X0 = 52; XP = 72
    for t in range(5): A(f"global_load_dwordx4 v[{C0+4*t}:{C0+4*t+3}], v18, s[24:25] offset:{256*t}")
    for t in range(5): A(f"global_load_dwordx4 v[{X0+4*t}:{X0+4*t+3}], v18, s[4:5] offset:{256*t}")
    A("v_and_b32 v19, 1, v14"); A("v_lshl_add_u32 v19, v19, 3, v17"); A("v_add_u32 v19, s54, v19")
    A(f"global_load_dwordx2 v[{XP}:{XP+1}], v19, s[4:5]")
    srd(36, 26, 27, 640 * 7680)
    A("v_mul_u32_u24 v17, 7680, v10"); A("v_mul_u32_u24 v19, s52, v11"); A("v_add3_u32 v17, v17, v19, s53")
    def dma_loop(vreg, n, lds0, step, flag):
        lp = newlabel("dma")
        A(f"s_mov_b32 m0, {lds0}"); A("s_mov_b32 s34, 0")
        A.label(lp)
        A(f"buffer_load_dwordx4 v{vreg}, s[36:39], s34 offen {flag} lds")
        A("s_add_u32 m0, m0, 1024"); A(f"s_add_u32 s34, s34, {step}"); A(f"s_cmp_lt_u32 s34, {n*step}"); A(f"s_cbranch_scc1 {lp}")
    dma_loop(17, 20, L_WMOD, 32 * 7680, wflag)
    def warm_and_wq():
        A("s_getpc_b64 s[56:57]"); lab = newlabel("pc"); A.label(lab)
        A(f"s_sub_u32 s56, s56, {lab}-{NAME}_kernel"); A("s_subb_u32 s57, s57, 0")
        A("s_and_b32 s34, s61, 15"); A("s_lshl_b32 s34, s34, 10"); A("v_lshl_add_u32 v19, v0, 4, s34")
        A("v_min_u32 v19, L_codeend-" + NAME + "_kernel-16, v19")
        A("global_load_dwordx4 v[76:79], v19, s[56:57]")
        srd(36, 10, 11, 640 * 8192)
        dma_loop(16, 20, L_WQ, 32 * 8192, wflag)
    warm_and_wq()
    stamp(1)
    A("s_waitcnt vmcnt(47)")
    A(f"s_mov_b32 s34, {hex(f2u(-math.log2(math.e)))}")
    for k in range(0, 20, 2):
        r = [C0 + k, C0 + k + 1]
        t = [20, 21, 22, 23]; e = [24, 25, 26, 27]
        for q in range(2):
            A(f"v_lshlrev_b32 v{t[2*q]}, 16, v{r[q]}"); A(f"v_and_b32 v{t[2*q+1]}, 0xffff0000, v{r[q]}")
        for q in range(4): A(f"v_mul_f32 v{e[q]}, s34, v{t[q]}")
        for q in range(4): A(f"v_exp_f32 v{e[q]}, v{e[q]}")
        for q in range(4): A(f"v_add_f32 v{e[q]}, 1.0, v{e[q]}")
        for q in range(4): A(f"v_rcp_f32 v{e[q]}, v{e[q]}")
        for q in range(4): A(f"v_mul_f32 v{e[q]}, v{t[q]}, v{e[q]}")
        for q in range(2): A(f"v_cvt_pk_bf16_f32 v{r[q]}, v{e[2*q]}, v{e[2*q+1]}")
    A("s_cmp_lg_u32 s50, 0"); A("s_cbranch_scc1 L_nostats")
    A("s_waitcnt vmcnt(41)")
    A("v_mov_b32 v20, 0"); A("v_mov_b32 v21, 0"); A("v_mov_b32 v22, 0x3f803f80")
    for k in range(20):
        A(f"v_dot2c_f32_bf16 v20, v{X0+k}, v22"); A(f"v_dot2c_f32_bf16 v21, v{X0+k}, v{X0+k}")
    for pat in ("row_ror:4", "row_ror:8"):
        A(f"v_add_f32_dpp v20, v20, v20 {pat} {FULL}"); A(f"v_add_f32_dpp v21, v21, v21 {pat} {FULL}")
    allred_rows("v_add_f32", [20, 21], [22, 23])
    def ln_scalars(s1, s2, t):
        A(f"v_mul_f32 v{t}, {hex(f2u(1/640))}, v{s1}"); A(f"v_mul_f32 v{s2}, {hex(f2u(1/640))}, v{s2}")
        A(f"v_fma_f32 v{s2}, -v{t}, v{t}, v{s2}"); A(f"v_max_f32 v{s2}, 0, v{s2}"); A(f"v_add_f32 v{s2}, {hex(f2u(1e-5))}, v{s2}")
        A(f"v_rsq_f32 v{s1}, v{s2}"); A(f"v_mul_f32 v{s2}, -v{t}, v{s1}".replace("v_mul_f32", "v_mul_f32_e64"))
    ln_scalars(20, 21, 22)
    for q in range(2):
        A(f"v_lshlrev_b32 v{24+2*q}, 16, v{XP+q}"); A(f"v_and_b32 v{25+2*q}, 0xffff0000, v{XP+q}")
    for q in range(4): A(f"v_fma_f32 v{24+q}, v{24+q}, v20, v21")
    A.label("L_nostats")
    AC = 80; WF = 96
    def gemv20(lds0, bfr):
        A(f"v_add_u32 v19, {lds0}, v15")
        def rd(Tt):
            for u in range(4):
                w = WF + 16 * (Tt & 1) + 4 * u
                A(f"ds_read_b64_tr_b16 v[{w}:{w+1}], v19 offset:{(4*Tt+u)*1024}")
                A(f"ds_read_b64_tr_b16 v[{w+2}:{w+3}], v19 offset:{(4*Tt+u)*1024+512}")
        rd(0)
        for Tt in range(5):
            A("s_waitcnt lgkmcnt(0)")
            if Tt < 4: rd(Tt + 1)
            for u in range(4):
                w = WF + 16 * (Tt & 1) + 4 * u
                c = f"v[{AC+4*u}:{AC+4*u+3}]"
                A(f"v_mfma_f32_16x16x32_bf16 {c}, v[{w}:{w+3}], v[{bfr+4*Tt}:{bfr+4*Tt+3}], {c if Tt else 0}")
        for u in range(1, 4):
            for r in range(4): A(f"v_mov_b32_dpp v{AC+r}, v{AC+4*u+r} quad_perm:[0,1,2,3] row_mask:0xf bank_mask:{hex(1<<u)}")
        for pat in ("row_ror:4", "row_ror:8"):
            for r in range(4): A(f"v_add_f32_dpp v{AC+r}, v{AC+r}, v{AC+r} {pat} {FULL}")
    A("s_waitcnt vmcnt(21)")
    stamp(2)
    gemv20(L_WMOD, C0)
    A("s_cmp_lg_u32 s50, 0"); A("s_cbranch_scc1 L_p1rest")
    for r in range(4): A(f"v_permlane32_swap_b32 v{AC+r}, v{AC+4+r}")
    for r in range(4): A(f"v_fma_f32 v{AC+r}, v{24+r}, v{AC+4+r}, v{AC+r}")
    for r in range(4): A(f"v_add_f32 v{AC+r}, v{AC+r}, v{24+r}")
    A("s_lshl_b32 s34, s51, 2"); A(f"v_lshl_add_u32 v19, v12, 4, s34"); A("v_lshl_add_u32 v19, v14, 3, v19")
    A("s_mov_b32 s58, 0x000f000f"); A("s_mov_b32 s59, 0")
    A("s_branch L_p1store")
    A.label("L_p1rest")
    A(f"s_add_u32 s34, s51, {WS_MR}"); A("v_mul_u32_u24 v19, 5120, v12"); A("v_lshl_add_u32 v19, v14, 3, v19"); A("v_add_u32 v19, s34, v19")
    A("s_mov_b32 s58, 0x000f000f"); A("s_mov_b32 s59, 0x000f000f")
    A.label("L_p1store")
    def pack2(dst, src):
        A(f"v_cvt_pk_bf16_f32 v{dst}, v{src}, v{src+1}"); A(f"v_cvt_pk_bf16_f32 v{dst+1}, v{src+2}, v{src+3}")
        A(f"v_min_u32 v{dst}, -2, v{dst}"); A(f"v_min_u32 v{dst+1}, -2, v{dst+1}")
    pack2(20, AC)
    def pollflags():
        A("v_and_b32 v22, 15, v0"); A("v_lshlrev_b32 v22, 2, v22")
        poll(["global_load_dword v23, v22, s[30:31] sc1"], [], 0, sleep=1, cmp="v_cmp_ne_u32 vcc, 1, v23")
    pollflags()
    stamp(3)
    A("s_mov_b64 exec, s[58:59]")
    A("buffer_store_dwordx2 v[20:21], v19, s[44:47], 0 offen sc1")
    A("s_mov_b64 exec, -1")
    A("s_branch L_p2")
    A.label("L_clear")
    A("s_sub_u32 s34, s60, 6"); A("s_lshl_b32 s34, s34, 3"); A("s_add_u32 s34, s34, s61"); A("s_sub_u32 s55, s34, 8")
    A(f"s_mul_i32 s34, s55, {WS_END // 16}"); A("v_lshl_add_u32 v19, v0, 4, s34")
    for r in range(4): A(f"v_mov_b32 v{20+r}, -1")
    for k in range(WS_END // 16 // 1024):
        A(f"s_mov_b32 s34, {k*1024}"); A("buffer_store_dwordx4 v[20:23], v19, s[44:47], s34 offen sc1")
    A("s_lshl_b32 s34, s55, 2"); A("v_mov_b32 v24, s34"); A("v_mov_b32 v25, 1")
    A("s_waitcnt vmcnt(0)")
    A("s_mov_b64 exec, 1"); A("global_store_dword v24, v25, s[30:31] sc1"); A("s_mov_b64 exec, -1")
    stamp(1)
    warm_and_wq()
    pollflags()
    stamp(3)
    A.label("L_p2")
    A("v_lshlrev_b32 v19, 8, v13"); A("v_lshl_add_u32 v19, v14, 6, v19"); A("v_lshl_add_u32 v19, v12, 4, v19")
    poll([f"buffer_load_dwordx4 v[{C0+4*t}:{C0+4*t+3}], v19, s[44:47], {'0' if t < 4 else 's48'} offen offset:{(1024*t) & 4095} sc1" for t in range(5)],
         range(C0, C0 + 20), 20, sleep=1)
    stamp(4)
    gemv20(L_WQ, C0)
    pack2(20, AC)
    A(f"s_add_u32 s34, s49, {WS_Q}"); A("v_lshlrev_b32 v19, 13, v12"); A("v_lshl_add_u32 v19, v14, 3, v19"); A("v_add_u32 v19, s34, v19")
    A("s_mov_b32 exec_lo, 0x000f000f"); A("s_mov_b32 exec_hi, 0x000f000f")
    A("buffer_store_dwordx2 v[20:21], v19, s[44:47], 0 offen sc1")
    A("s_mov_b64 exec, 0xffff")
    A("s_and_b32 s34, s2, 127"); A("s_lshl_b32 s34, s34, 8"); A(f"s_add_u32 s34, s34, {WS_Q}"); A("v_lshl_add_u32 v19, v0, 4, s34")
    poll(["buffer_load_dwordx4 v[24:27], v19, s[44:47], 0 offen sc1"], range(24, 28), 22, sleep=1)
    A(f"v_lshlrev_b32 v19, 4, v0"); A(f"v_add_u32 v19, {L_QV}, v19")
    A("ds_write_b128 v19, v[24:27]")
    A("s_mov_b64 exec, -1")
    stamp(5)
    def tail_decode(pfx):
        A("s_mov_b32 s62, s61"); A("s_cmp_lt_u32 s61, 20"); A(f"s_cbranch_scc1 {pfx}_wo")
        A("s_lshl_b32 s62, s60, 2"); A("s_and_b32 s34, s61, 3"); A("s_add_u32 s62, s62, s34")
        A("s_cmp_lt_u32 s61, 24"); A(f"s_cbranch_scc1 {pfx}_w2")
        A("s_cmp_ge_u32 s60, 2"); A(f"s_cbranch_scc1 {pfx}_w1b")
        A("s_cmp_ge_u32 s61, 28"); A(f"s_cbranch_scc1 {pfx}_w1")
        A("s_add_u32 s62, s62, 32"); A(f"s_branch {pfx}_w2")
        A.label(f"{pfx}_w1b")
        A("s_lshl_b32 s62, s60, 3"); A("s_add_u32 s62, s62, s61"); A("s_sub_u32 s62, s62, 32")
        A("s_cmp_ge_u32 s62, 54"); A(f"s_cbranch_scc1 {pfx}_none")
    tail_decode("L_d")
    A.label("L_d_w1")
    srd(36, 16, 17, 640 * 3456)
    A("v_lshl_add_u32 v17, v13, 3, v14"); A("v_mul_u32_u24 v17, 3456, v17"); A("v_lshl_add_u32 v17, v12, 4, v17")
    A("s_lshl_b32 s34, s62, 6"); A("v_add_u32 v17, s34, v17")
    for t in range(20):
        for e in range(2):
            row = (256*e + 128*((t>>1)&1) + 32*(t>>2) + 4*(t&1)) if t < 16 else (512 + 32*(t-16) + 4*e)
            A(f"s_mov_b32 m0, {L_WT + (2*t+e)*1024}"); A(f"s_mov_b32 s34, {row*3456}")
            A(f"buffer_load_dwordx4 v17, s[36:39], s34 offen {wflag} lds")
    A("s_branch L_d_none")
    A.label("L_d_w2")
    srd(36, 20, 21, 1728 * 1280)
    A("v_mul_u32_u24 v17, 1280, v10"); A("v_lshl_add_u32 v17, v11, 4, v17"); A("s_lshl_b32 s34, s62, 5"); A("v_add_u32 v17, s34, v17")
    dma_loop(17, 56, L_WT, 32 * 1280, wflag)
    A("s_branch L_d_none")
    A.label("L_d_wo")
    srd(36, 12, 13, 4096 * 1280)
    A("v_lshlrev_b32 v17, 2, v13"); A("v_add_u32 v17, v17, v14"); A("v_mul_u32_u24 v17, 2560, v17"); A("v_lshl_add_u32 v17, v12, 4, v17")
    A(f"s_mul_i32 s34, s60, {128*1280}"); A("s_lshl_b32 s35, s62, 6"); A("s_add_u32 s34, s34, s35"); A("v_add_u32 v17, s34, v17")
    A("v_add_u32 v18, 256, v17")
    for dd in range(16):
        A(f"s_mov_b32 m0, {L_WT + dd*2048}"); A(f"s_mov_b32 s34, {(1024*(dd>>2) + 32*(dd&3))*1280}")
        A(f"buffer_load_dwordx4 v17, s[36:39], s34 offen {wflag} lds")
        A(f"buffer_load_dwordx4 v18, s[36:39], s34 offen offset:1024 {wflag} lds")
    A.label("L_d_none")
    A("v_and_b32 v19, 7, v0"); A("v_lshlrev_b32 v19, 3, v19"); A(f"v_add_u32 v19, {L_ML}, v19")
    poll(["ds_read_b64 v[20:21], v19"], [20, 21], 22, wait="lgkmcnt(0)", sleep=4)
    A(f"v_max_f32_dpp v22, v20, v20 row_half_mirror {FULL}")
    for pat in ("quad_perm:[1,0,3,2]", "quad_perm:[2,3,0,1]"): A(f"v_max_f32_dpp v22, v22, v22 {pat} {FULL}")
    A("v_sub_f32 v20, v20, v22"); A("v_exp_f32 v20, v20"); A("v_mul_f32 v21, v21, v20")
    for pat in ("row_half_mirror", "quad_perm:[1,0,3,2]", "quad_perm:[2,3,0,1]"): A(f"v_add_f32_dpp v21, v21, v21 {pat} {FULL}")
    A("v_rcp_f32 v23, v21"); A("v_log_f32 v21, v21"); A("v_mul_f32 v20, v20, v23"); A("v_add_f32 v21, v21, v22")
    A("v_min_u32 v21, -2, v21")
    FW = [50, 52, 54, 56, 58, 96, 98]
    for w in range(7): A(f"v_readlane_b32 s{FW[w]}, v20, {w}")
    A("s_and_b32 s34, s2, 31"); A("s_bfe_u32 s35, s2, 0x20005"); A("s_lshl_b32 s35, s35, 1"); A("s_lshr_b32 s63, s2, 7"); A("s_add_u32 s35, s35, s63")
    A("s_lshl_b32 s63, s34, 7"); A("s_lshl_b32 s49, s35, 2"); A("s_add_u32 s63, s63, s49"); A(f"s_add_u32 s63, s63, {WS_LAM}")
    A("v_mov_b32 v19, s63")
    A("s_mov_b64 exec, 1"); A("buffer_store_dword v21, v19, s[44:47], 0 offen sc1"); A("s_mov_b64 exec, -1")
    A("s_lshl_b32 s34, s34, 11"); A("s_lshl_b32 s35, s35, 8"); A("s_add_u32 s34, s34, s35"); A(f"s_add_u32 s34, s34, {WS_O}")
    A("v_and_b32 v18, 7, v0"); A("v_lshl_add_u32 v18, v14, 3, v18"); A("v_lshl_add_u32 v18, v18, 3, s34")
    A(f"v_lshlrev_b32 v19, 4, v0"); A(f"v_add_u32 v19, {L_RED}, v19")
    A("s_waitcnt vmcnt(0)")
    stamp(6)
    A("s_barrier")
    for w in range(7): A(f"ds_read_b128 v[{32+4*w}:{35+4*w}], v19 offset:{1024*w}")
    for w in range(7):
        A(f"s_waitcnt lgkmcnt({6-w})")
        for hh in range(2):
            r = 32 + 4*w + 2*hh
            if w == 0: A(f"v_pk_mul_f32 v[{20+2*hh}:{21+2*hh}], v[{r}:{r+1}], s[{FW[w]}:{FW[w]+1}] op_sel_hi:[1,0]")
            else: A(f"v_pk_fma_f32 v[{20+2*hh}:{21+2*hh}], v[{r}:{r+1}], s[{FW[w]}:{FW[w]+1}], v[{20+2*hh}:{21+2*hh}] op_sel_hi:[1,0,1]")
    for r in range(4): A(f"v_add_f32_dpp v{20+r}, v{20+r}, v{20+r} row_ror:8 {FULL}")
    pack2(24, 20)
    A("s_mov_b32 exec_lo, 0x00ff00ff"); A("s_mov_b32 exec_hi, 0x00ff00ff")
    A("buffer_store_dwordx2 v[24:25], v18, s[44:47], 0 offen sc1")
    A("s_mov_b64 exec, -1")
    A.label("L_tail")
    A.fence(); A("s_nop 1")
    stamp(7)
    A("v_and_b32 v12, 3, v0"); A("v_bfe_u32 v13, v0, 2, 2"); A("v_lshrrev_b32 v14, 4, v0")
    A("s_lshl_b32 s34, s3, 10"); A(f"s_add_u32 s34, s34, {L_RED2}"); A("v_lshl_add_u32 v2, v0, 4, s34")
    tail_decode("L_t")
    A.label("L_t_w1")
    WF = 32
    A("s_lshr_b32 s34, s3, 1"); A("s_mul_i32 s35, s34, 320"); A("s_mul_i32 s34, s34, 10240"); A("s_and_b32 s49, s3, 1"); A("s_lshl_b32 s49, s49, 5")
    A("s_add_u32 s34, s34, s49"); A(f"s_add_u32 s34, s34, {L_WT}")
    A("v_lshrrev_b32 v3, 2, v0"); A("v_lshlrev_b32 v3, 6, v3"); A("v_lshl_add_u32 v3, v12, 3, v3"); A("v_add_u32 v3, s34, v3")
    for t in range(5):
        A(f"ds_read_b64_tr_b16 v[{WF+4*t}:{WF+4*t+1}], v3 offset:{2048*t}")
        A(f"ds_read_b64_tr_b16 v[{WF+4*t+2}:{WF+4*t+3}], v3 offset:{2048*t+1024}")
    A(f"s_add_u32 s35, s35, {L_H2}"); A("v_mul_u32_u24 v4, 1344, v12"); A("v_lshl_add_u32 v4, v14, 4, v4"); A("v_add_u32 v4, s35, v4")
    A("s_cmp_ge_u32 s3, 4"); A("s_cbranch_scc1 L_w1_mm")
    A("s_lshl_b32 s34, s62, 6"); A("v_lshlrev_b32 v5, 4, v14"); A("v_lshl_add_u32 v5, v12, 2, v5"); A("v_add_u32 v5, s34, v5")
    A("global_load_dword v6, v5, s[18:19]")
    MK = 16; B1 = 52; BQ = 60; DX = 68; DC = 80; DS = 92; DD = 104; LA = 116
    diagmask(MK, 10, 11)
    A("v_bfe_u32 v10, v0, 3, 1"); A("v_cmp_eq_u32 vcc, 0, v10")
    for m in range(4):
        A(f"v_cndmask_b32 v{20+m}, 0, v{MK+m}, vcc"); A(f"v_xor_b32 v{24+m}, v{20+m}, v{MK+m}")
    for m in range(8):
        A(f"v_and_b32 v{B1+m}, 0x3f803f80, v{20+m}"); A(f"v_and_b32 v{BQ+m}, 0x3e803e80, v{20+m}")
    A("v_and_b32 v10, 15, v0"); A("v_lshlrev_b32 v10, 4, v10")
    A("s_mul_i32 s34, s3, 1280"); A("v_add_u32 v11, s34, v10")
    for k in range(5): A(f"global_load_dwordx4 v[{LA+4*k}:{LA+4*k+3}], v11, s[4:5] offset:{256*k}")
    A("s_mul_i32 s34, s3, 5120"); A(f"s_add_u32 s34, s34, {WS_MR + 1280}"); A("v_add_u32 v15, s34, v10")
    poll([f"buffer_load_dwordx4 v[{LA+20+4*k}:{LA+23+4*k}], v15, s[44:47], 0 offen offset:{256*k} sc1" for k in range(10)],
         range(LA + 20, LA + 60), 28, sleep=1)
    for (dst, src, c0) in ((DX, LA, "0"), (DS, LA + 20, "0"), (DC, LA + 40, "1.0")):
        for k in range(5):
            d = f"v[{dst+4*(k>>1)}:{dst+4*(k>>1)+3}]"
            A(f"v_mfma_f32_16x16x32_bf16 {d}, v[{src+4*k}:{src+4*k+3}], v[{BQ+4*(k&1)}:{BQ+4*(k&1)+3}], {d if k & 1 else c0}")
    A("v_mul_u32_u24 v15, 5120, v14"); A(f"v_add_u32 v15, v15, v11"); A(f"v_add_u32 v15, {WS_P}, v15"); A("s_movk_i32 s48, 20480")
    A("s_mul_i32 s34, s3, 1344"); A(f"s_add_u32 s34, s34, {L_H2}"); A("v_lshl_add_u32 v7, v0, 4, s34")
    A("v_lshlrev_b32 v8, 6, v14"); A("v_lshl_add_u32 v8, v12, 4, v8"); A("v_and_b32 v9, 1, v13"); A("v_lshl_add_u32 v8, v9, 3, v8"); A("v_add_u32 v8, s34, v8")
    A("v_lshrrev_b32 v9, 5, v0"); A("v_lshlrev_b32 v9, 10, v9"); A("v_and_b32 v10, 1, v14"); A("v_lshl_add_u32 v9, v10, 9, v9")
    A("v_bfe_u32 v10, v0, 1, 1"); A("v_lshl_add_u32 v9, v10, 8, v9"); A("v_lshl_add_u32 v9, v13, 4, v9")
    A("v_and_b32 v10, 1, v0"); A("v_lshl_add_u32 v9, v10, 3, v9"); A(f"v_add_u32 v9, {L_RED2}, v9")
    A("v_lshlrev_b32 v30, 16, v6"); A("v_and_b32 v31, 0xffff0000, v6")
    A("s_lshl_b32 s34, s62, 8"); A(f"s_add_u32 s34, s34, {WS_H1}"); A("v_lshl_add_u32 v5, v0, 2, s34")
    stamp(8)
    loads = []; mm = []
    for k in range(5):
        for hh in range(2):
            r = LA + 8*k + 4*hh
            loads.append(f"buffer_load_dwordx4 v[{r}:{r+3}], v15, s[44:47], {'s48' if hh else '0'} offen offset:{256*k} sc1")
            d = f"v[{DD+4*(k>>1)}:{DD+4*(k>>1)+3}]"; c = d if (k & 1 or hh) else f"v[{DX+4*(k>>1)}:{DX+4*(k>>1)+3}]"
            mm.append(f"v_mfma_f32_16x16x32_bf16 {d}, v[{r}:{r+3}], v[{B1+4*(k&1)}:{B1+4*(k&1)+3}], {c}")
    poll(loads, range(LA, LA + 40), 28, extra=mm)
    stamp(9)
    A(f"v_pk_add_f32 v[20:21], v[{DD}:{DD+1}], v[{DD+2}:{DD+3}]"); A(f"v_pk_mul_f32 v[22:23], v[{DD}:{DD+1}], v[{DD}:{DD+1}]")
    A(f"v_pk_fma_f32 v[22:23], v[{DD+2}:{DD+3}], v[{DD+2}:{DD+3}], v[22:23]")
    for k in range(2, 6):
        A(f"v_pk_add_f32 v[20:21], v[20:21], v[{DD+2*k}:{DD+2*k+1}]")
        A(f"v_pk_fma_f32 v[22:23], v[{DD+2*k}:{DD+2*k+1}], v[{DD+2*k}:{DD+2*k+1}], v[22:23]")
    A("v_add_f32 v20, v20, v21"); A("v_add_f32 v21, v22, v23")
    for pat in ("row_ror:8", "row_ror:4", "row_ror:2", "row_ror:1"):
        A(f"v_add_f32_dpp v20, v20, v20 {pat} {FULL}"); A(f"v_add_f32_dpp v21, v21, v21 {pat} {FULL}")
    allred_rows("v_add_f32", [20, 21], [22, 23])
    ln_scalars(20, 21, 22)
    for k in range(6): A(f"v_pk_fma_f32 v[{DD+2*k}:{DD+2*k+1}], v[{DD+2*k}:{DD+2*k+1}], v[20:21], v[20:21] op_sel:[0,0,1] op_sel_hi:[1,0,1]")
    for k in range(6): A(f"v_pk_fma_f32 v[{DD+2*k}:{DD+2*k+1}], v[{DD+2*k}:{DD+2*k+1}], v[{DC+2*k}:{DC+2*k+1}], v[{DS+2*k}:{DS+2*k+1}]")
    for k in range(6): A(f"v_cvt_pk_bf16_f32 v{20+k}, v{DD+2*k}, v{DD+2*k+1}")
    A("ds_write_b128 v7, v[20:23]")
    A("s_mov_b32 exec_lo, 0x00ff00ff"); A("s_mov_b32 exec_hi, 0x00ff00ff")
    A("ds_write_b64 v8, v[24:25] offset:1024")
    A("s_mov_b64 exec, -1")
    A.label("L_w1_mm")
    A("s_waitcnt lgkmcnt(0)")
    A("s_barrier")
    for t in range(5): A(f"ds_read_b128 v[{LA+4*t}:{LA+4*t+3}], v4 offset:{64*t}")
    for t in range(5):
        A(f"s_waitcnt lgkmcnt({4-t})")
        A(f"v_mfma_f32_16x16x32_bf16 v[20:23], v[{WF+4*t}:{WF+4*t+3}], v[{LA+4*t}:{LA+4*t+3}], {'v[20:23]' if t else 0}")
    A("ds_write_b128 v2, v[20:23]")
    A("s_waitcnt lgkmcnt(0)")
    A("s_barrier")
    A("s_cmp_lg_u32 s3, 0"); A("s_cbranch_scc1 L_fin")
    for k in range(4): A(f"ds_read_b64 v[{20+2*k}:{21+2*k}], v9 offset:{2048*k}")
    K0 = -2 * 0.7978845608028654 * math.log2(math.e)
    A(f"s_mov_b32 s34, {hex(f2u(K0 * 0.044715))}"); A(f"v_mov_b32 v10, {hex(f2u(K0))}")
    for k in range(4):
        A(f"s_waitcnt lgkmcnt({3-k})"); A(f"v_pk_add_f32 v[30:31], v[30:31], v[{20+2*k}:{21+2*k}]")
    A("v_pk_mul_f32 v[20:21], v[30:31], v[30:31]")
    A("v_fma_f32 v20, v20, s34, v10"); A("v_fma_f32 v21, v21, s34, v10")
    A("v_pk_mul_f32 v[20:21], v[20:21], v[30:31]")
    A("v_exp_f32 v20, v20"); A("v_exp_f32 v21, v21"); A("v_add_f32 v20, 1.0, v20"); A("v_add_f32 v21, 1.0, v21")
    A("v_rcp_f32 v20, v20"); A("v_rcp_f32 v21, v21")
    A("v_pk_mul_f32 v[20:21], v[20:21], v[30:31]")
    A("v_cvt_pk_bf16_f32 v20, v20, v21"); A("v_min_u32 v20, -2, v20")
    A("buffer_store_dword v20, v5, s[44:47], 0 offen sc1")
    stamp(10)
    A("s_branch L_fin")
    A.label("L_t_w2")
    A("s_cmp_eq_u32 s3, 7"); A("s_cbranch_scc1 L_w2_red")
    A("s_lshl_b32 s34, s3, 13"); A(f"s_add_u32 s34, s34, {L_WT}"); A("v_lshl_add_u32 v3, v0, 3, s34")
    for t in range(8):
        if t == 4: A("s_waitcnt lgkmcnt(0)")
        A(f"ds_read_b64_tr_b16 v[{32+4*t}:{33+4*t}], v3 offset:{1024*t}"); A(f"ds_read_b64_tr_b16 v[{34+4*t}:{35+4*t}], v3 offset:{1024*t+512}")
    A("s_lshl_b32 s34, s3, 3"); A("v_add_u32 v4, s34, v13"); A("v_add_u32 v5, 4, v4"); A("v_min_u32 v5, 53, v5")
    A("v_lshlrev_b32 v6, 6, v14"); A("v_lshl_add_u32 v6, v12, 4, v6"); A(f"v_add_u32 v6, {WS_H1}, v6")
    A("v_lshl_add_u32 v4, v4, 8, v6"); A("v_lshl_add_u32 v5, v5, 8, v6")
    A("s_waitcnt lgkmcnt(0)")
    stamp(8)
    mm = [f"v_mfma_f32_16x16x32_bf16 v[{80+4*(t&3)}:{83+4*(t&3)}], v[{32+4*t}:{35+4*t}], v[{64+4*(t>>2)}:{67+4*(t>>2)}], " + (f"v[{80+4*(t&3)}:{83+4*(t&3)}]" if t >= 4 else "0") for t in range(8)]
    poll(["buffer_load_dwordx4 v[64:67], v4, s[44:47], 0 offen sc1", "buffer_load_dwordx4 v[68:71], v5, s[44:47], 0 offen sc1"], range(64, 72), 28, extra=mm)
    stamp(9)
    for u in range(1, 4):
        for r in range(4): A(f"v_mov_b32_dpp v{80+r}, v{80+4*u+r} quad_perm:[0,1,2,3] row_mask:0xf bank_mask:{hex(1<<u)}")
    A("ds_write_b128 v2, v[80:83]")
    A("s_waitcnt lgkmcnt(0)")
    A("s_barrier")
    A("s_branch L_fin")
    A.label("L_w2_red")
    A("s_setprio 3")
    A("s_lshl_b32 s34, s62, 5"); A("v_lshl_add_u32 v3, v14, 3, s34")
    A("global_load_dwordx2 v[20:21], v3, s[22:23]")
    A("v_mul_u32_u24 v4, 1280, v12"); A("v_add_u32 v4, v4, v3")
    A("global_load_dwordx2 v[22:23], v4, s[4:5]")
    A("v_mul_u32_u24 v5, 5120, v12"); A("v_add_u32 v5, v5, v3"); A(f"v_add_u32 v5, {WS_MR + 3840}, v5")
    poll(["buffer_load_dwordx2 v[24:25], v5, s[44:47], 0 offen sc1"], [24, 25], 28, sleep=1)
    def unpack(dst, src):
        for q in range(2):
            A(f"v_lshlrev_b32 v{dst+2*q}, 16, v{src+q}"); A(f"v_and_b32 v{dst+2*q+1}, 0xffff0000, v{src+q}")
    unpack(32, 20); unpack(36, 22); unpack(40, 24)
    for r in range(4): A(f"v_fma_f32 v{36+r}, v{40+r}, v{32+r}, v{36+r}")
    for r in range(4): A(f"v_mul_f32 v{36+r}, 0x3e800000, v{36+r}")
    A("v_mul_u32_u24 v5, 5120, v13"); A(f"v_add_u32 v5, v5, v4"); A(f"v_add_u32 v5, {WS_P}, v5"); A("s_movk_i32 s48, 20480")
    poll(["buffer_load_dwordx2 v[20:21], v5, s[44:47], 0 offen sc1", "buffer_load_dwordx2 v[22:23], v5, s[44:47], s48 offen sc1"], range(20, 24), 28, sleep=2)
    unpack(44, 20); unpack(48, 22)
    for r in range(4): A(f"v_add_f32 v{36+r}, v{36+r}, v{44+r}")
    for r in range(4): A(f"v_add_f32 v{36+r}, v{36+r}, v{48+r}")
    A(f"v_lshlrev_b32 v6, 4, v0"); A(f"v_add_u32 v6, {L_RED2}, v6")
    stamp(8)
    A("s_barrier")
    for w in range(7): A(f"ds_read_b128 v[{64+4*w}:{67+4*w}], v6 offset:{1024*w}")
    for w in range(1, 7):
        A(f"s_waitcnt lgkmcnt({6-w})")
        for hh in range(2): A(f"v_pk_add_f32 v[{64+2*hh}:{65+2*hh}], v[{64+2*hh}:{65+2*hh}], v[{64+4*w+2*hh}:{65+4*w+2*hh}]")
    for hh in range(2): A(f"v_pk_fma_f32 v[{64+2*hh}:{65+2*hh}], v[{64+2*hh}:{65+2*hh}], v[{40+2*hh}:{41+2*hh}], v[{36+2*hh}:{37+2*hh}]")
    for pat in ("row_ror:4", "row_ror:8"):
        for r in range(4): A(f"v_add_f32_dpp v{64+r}, v{64+r}, v{64+r} {pat} {FULL}")
    A("v_cvt_pk_bf16_f32 v20, v64, v65"); A("v_cvt_pk_bf16_f32 v21, v66, v67")
    A("s_mov_b32 exec_lo, 0x000f000f"); A("s_mov_b32 exec_hi, 0x000f000f")
    A(f"global_store_dwordx2 v4, v[20:21], s[28:29] {outflag}")
    A("s_mov_b64 exec, -1")
    stamp(10)
    A("s_branch L_fin")
    A.label("L_t_wo")
    A("s_lshl_b32 s34, s3, 12"); A(f"s_add_u32 s34, s34, {L_WT}")
    A("v_lshrrev_b32 v3, 2, v0"); A("v_lshlrev_b32 v3, 6, v3"); A("v_lshl_add_u32 v3, v12, 3, v3"); A("v_add_u32 v3, s34, v3")
    for u in range(2):
        for tau in range(2):
            w = 32 + 8*u + 4*tau
            A(f"ds_read_b64_tr_b16 v[{w}:{w+1}], v3 offset:{2048*u + 32*tau}"); A(f"ds_read_b64_tr_b16 v[{w+2}:{w+3}], v3 offset:{2048*u + 1024 + 32*tau}")
    A("s_lshr_b32 s34, s3, 1"); A("s_lshl_b32 s34, s34, 3"); A("s_add_u32 s34, s34, s60")
    A("v_and_b32 v4, 7, v0"); A("s_lshl_b32 s35, s34, 7"); A(f"s_add_u32 s35, s35, {WS_LAM}"); A("v_lshl_add_u32 v5, v4, 2, s35")
    A("v_bfe_u32 v6, v0, 1, 2"); A("v_bfe_u32 v7, v0, 3, 1")
    A("v_lshlrev_b32 v8, 5, v7"); A("v_lshl_add_u32 v8, v14, 3, v8"); A("s_lshl_b32 s35, s62, 6"); A("v_add_u32 v8, s35, v8")
    A("v_mul_u32_u24 v9, 5120, v6"); A("v_add_u32 v9, v9, v8"); A(f"v_add_u32 v9, {WS_MR}, v9")
    A("s_lshl_b32 s34, s34, 11"); A("s_and_b32 s49, s3, 1"); A("s_lshl_b32 s49, s49, 7"); A("s_add_u32 s34, s34, s49"); A(f"s_add_u32 s34, s34, {WS_O}")
    A("v_lshrrev_b32 v10, 3, v0"); A("v_lshlrev_b32 v11, 8, v10"); A("v_lshl_add_u32 v11, v4, 4, v11"); A("v_add_u32 v11, s34, v11")
    A("s_mul_i32 s34, s3, 1152"); A(f"s_add_u32 s34, s34, {L_TR}")
    A("v_mul_u32_u24 v15, 144, v10"); A("v_lshl_add_u32 v15, v4, 4, v15"); A("v_add_u32 v15, s34, v15")
    A("v_mul_u32_u24 v16, 144, v4"); A("v_lshl_add_u32 v16, v14, 4, v16"); A("v_add_u32 v16, s34, v16")
    A(f"v_mov_b32 v18, {L_ZERO}"); A("v_cmp_eq_u32 vcc, 0, v7"); A("v_cndmask_b32 v17, v16, v18, vcc"); A("v_cndmask_b32 v16, v18, v16, vcc")
    A("s_mul_i32 s34, s60, 5120"); A(f"s_add_u32 s34, s34, {WS_P}"); A("v_mul_u32_u24 v18, 1280, v6"); A("v_add3_u32 v18, v18, v8, s34")
    A(f"v_lshlrev_b32 v19, 4, v0"); A(f"v_add_u32 v19, {L_RED2}, v19")
    poll(["buffer_load_dword v20, v5, s[44:47], 0 offen sc1", "buffer_load_dwordx2 v[22:23], v9, s[44:47], 0 offen sc1"], [20, 22, 23], 28, sleep=1)
    A(f"v_sub_f32_dpp v21, v20, v20 quad_perm:[1,0,3,2] {FULL}")
    A("v_exp_f32 v21, v21"); unpack(24, 22); A("v_add_f32 v21, 1.0, v21"); A("v_rcp_f32 v21, v21")
    for r in range(4): A(f"v_mul_f32 v{24+r}, v{24+r}, v21")
    A("s_waitcnt lgkmcnt(0)")
    stamp(8)
    poll(["buffer_load_dwordx4 v[64:67], v11, s[44:47], 0 offen sc1"], range(64, 68), 28, extra=["ds_write_b128 v15, v[64:67]"])
    stamp(9)
    A("s_waitcnt lgkmcnt(0)")
    for u in range(2):
        for tau in range(2): A(f"ds_read_b128 v[{68+8*u+4*tau}:{71+8*u+4*tau}], v{16+tau} offset:{64*u}")
    for k in range(4):
        A(f"s_waitcnt lgkmcnt({3-k})")
        A(f"v_mfma_f32_16x16x32_bf16 v[20:23], v[{32+4*k}:{35+4*k}], v[{68+4*k}:{71+4*k}], {'v[20:23]' if k else 0}")
    for hh in range(2): A(f"v_pk_mul_f32 v[{20+2*hh}:{21+2*hh}], v[{20+2*hh}:{21+2*hh}], v[{24+2*hh}:{25+2*hh}]")
    A("ds_write_b128 v2, v[20:23]")
    A("s_waitcnt lgkmcnt(0)")
    A("s_barrier")
    A("s_cmp_lg_u32 s3, 0"); A("s_cbranch_scc1 L_fin")
    for w in range(8): A(f"ds_read_b128 v[{64+4*w}:{67+4*w}], v19 offset:{1024*w}")
    for w in range(1, 8):
        A(f"s_waitcnt lgkmcnt({7-w})")
        for hh in range(2): A(f"v_pk_add_f32 v[{64+2*hh}:{65+2*hh}], v[{64+2*hh}:{65+2*hh}], v[{64+4*w+2*hh}:{65+4*w+2*hh}]")
    for r in range(4): A(f"v_add_f32_dpp v{64+r}, v{64+r}, v{64+r} quad_perm:[1,0,3,2] {FULL}")
    pack2(20, 64)
    A("s_mov_b32 exec_lo, 0x55555555"); A("s_mov_b32 exec_hi, 0x55555555")
    A("buffer_store_dwordx2 v[20:21], v18, s[44:47], 0 offen sc1")
    A("s_mov_b64 exec, -1")
    stamp(10)
    A.label("L_t_none")
    A.label("L_fin")
    if diag:
        A("s_waitcnt vmcnt(0)")
        stamp(11)
        A("s_lshl_b32 s34, s2, 3"); A("s_add_u32 s34, s34, s3"); A("s_lshl_b32 s34, s34, 7")
        A("s_add_u32 s32, s32, 0x20000000"); A("s_addc_u32 s33, s33, 0")
        A("s_mov_b64 exec, 1"); A("v_mov_b32 v1, s34")
        for i in range(16):
            A(f"v_mov_b32 v{2+2*i}, s{64+2*i}"); A(f"v_mov_b32 v{3+2*i}, s{65+2*i}")
            A(f"global_store_dwordx2 v1, v[{2+2*i}:{3+2*i}], s[32:33] offset:{8*i}")
    A.label("L_exit")
    A("s_endpgm")
    A.label("L_codeend")
    A.raw('.section .rodata,"a"'); A.raw(".p2align 6"); A.raw(f".amdhsa_kernel {NAME}_kernel")
    for l in ("next_free_vgpr 256", "next_free_sgpr 102", "accum_offset 256", "group_segment_fixed_size 0", "kernarg_size 120",
              "user_sgpr_count 2", "user_sgpr_kernarg_segment_ptr 1", "system_sgpr_workgroup_id_x 1", "float_denorm_mode_32 3"):
        A.raw("  .amdhsa_" + l)
    A.raw(".end_amdhsa_kernel")
    return A.text()

if __name__ == "__main__":
    import argparse
    ap = argparse.ArgumentParser(); ap.add_argument("out"); ap.add_argument("kw", nargs="*")
    a = ap.parse_args()
    kw = {}
    for x in a.kw:
        k, v = x.split("=")
        try: v = eval(v)
        except Exception: pass
        kw[k] = v
    open(a.out, "w").write(gen(**kw))
```

```python
import sys, math, os, struct
from asmlib import Asm
NAME = "adaLN_cond__sliding_block_cached__dense_activation_gelu__decode"
HEADER = open(os.path.join(os.path.dirname(os.path.abspath(__file__)), "header.txt")).read()

WS_HP, WS_MR, WS_MF, WS_P, WS_H1, WS_LAM, WS_O, WS_QP, WS_USED = 0x0, 0x2800, 0x7800, 0x8C00, 0xB400, 0xC400, 0xC800, 0x10800, 0x19000
L_WMOD, L_WQ, L_WT = 0, 20480, 40960
L_QV = 98304; L_ML = L_QV + 256; L_ZERO = L_QV + 512; L_PROG = L_QV + 768; L_RANK = L_PROG + 4; L_NEAR = L_PROG + 8
L_RED = L_QV + 1024
L_TR = L_RED + 8192
L_H2 = L_TR + 9216
L_RED2 = L_H2 + 5376
L_OC = L_RED2 + 9216
L_END = L_OC + 1024
L_CS = L_WQ + 6144
L_STAT = L_PROG + 64
L_PSEEN = L_PROG + 12
L_XS = L_WMOD
f2u = lambda f: struct.unpack("<I", struct.pack("<f", f))[0]
FULL = "row_mask:0xf bank_mask:0xf"

DOC = """
Generated by dev/gen12.py (hand-written generator). One persistent launch, 256 workgroups (one per CU) x 8 waves.
Workgroup j owns (batch, head) = j & 127 and one half (j >> 7) of the 2048-key window.
 waves 1..7: stream K then V with nt loads into registers (window of 3-4 loads per wave), QK^T with dot2 + DPP,
             per-wave true-max softmax, PV with MFMA; wave 0 (helper): prologue GEMVs, one 16-key chunk, reductions.
 prologue  : silu(c) @ w_mod (4-way K split) -> h partials -> h @ wq (4-way K split) -> q
 tail      : O records -> @ wo (160 wg) -> x1 partials -> LN, @ w1, gelu (54 wg) -> @ w2, residual (40 wg)
Hand-offs go through d_ws. Workgroups 240..255 first fill every hand-off word with 0xffffffff and raise flags in
d_debug; data words are never 0xffffffff, so each word read is its own ready flag. Nothing found in d_ws on entry is used.
O records are first stored to the local L2 only; they are stored again device-wide when the die ids say a reader is
elsewhere or when any wait lasts long, so any placement works. Die ids, arrival ranks and the near/far vote only pick
between equally valid choices (which of two identical copies to read, how many loads to keep in flight).
"""
def gen(diag=False, D=3, wflag="nt", tflag="", spin=60000, outflag="", NPRE=3, dbgout=False, kvflag="nt", POS=60, GAP=44, touch=False, tl=(), skip=(),
        sl=(8, 16, 16, 16, 16), mk=(22, 34, 0), PG=15, PF=8, WB=0, DL=4, L0=62, maskB=True, specC=False, dC=1, dB=0, barW=True, slB=0, amp=None, pst="sc1", pld="sc1", cst="sc1", conc=True, PFW=1, thB=64, RS=0x60000, slR=6, WQW=0, bal=((0.7, 0.2), (0.7, 0.2), (0.6, 0.0)), RD=4, wboost=0, slowr=(), sloww=4, lamx=(0x00ffffff, 0x00ff00ff), W1T=0, w1flag='', maskA=True, canB=False, slA=0, cank=0, only=None, slowr2=(), Dsched=((0, 3), (66, 4), (70, 6)), rboost=(), canM=4, pfc=True, mkp=0, pfc1=True, pfc2=True, w2wait=False, pfa=5, hown=False, early=0, stouch=0, vfirst=False, vtouch=0, cpad=0, calign=0, ost='sc1', loc=True, TMO=64, band=3, nbp=2, canF=1, hvlate=True, wqfirst=False, cun=1, OS=512, nbr=1, thA=0, slC=0, qfl='sc1', clrk=None, head=True, fixc=None, dbgc=False, lin=True, specB=True, w2f=True, warm3=False, cyc=False, lamE=False, nsum=11, gprio=True, nbp2=0, mallp=0, wmode=0, MFB=0x180000, forceloc=0, bm=(34, 46, 57), BMAX=4, wk=0, rk=(0, 0), barE=None, cpos=2, gord=False, rot=(2, 7), ampwg=167, ocw=2, nv=10, nomod=0, near=False, gm={}, gmix=0, c2=2, w2b=8, nb1=False, d2=0, pfs=0, pha=0, pfa1=5, pfd=0, tight=True, il1=False, mkf=14, WD=4, marg=False, pcl=False, ntr=2, G=4, rotk=56, amps=None, xb=(), xr=None, xm=16, xs=0, pg=True, spad=None, endp=True, pads=0, split=150):
    assert rotk % (7*G) == 0
    head = False
    kvflag = kvflag.replace('_', ' '); tflag = tflag.replace('_', ' '); wflag = wflag.replace('_', ' ')
    if loc: ost = ''; lamx = (0xffffffff, 0xffffffff)
    A = Asm()
    global WS_HP, WS_MR, WS_MF, WS_P, WS_H1, WS_LAM, WS_O, WS_QP
    WS_HP, WS_MR = 0, 0x2800
    WS_QP = RS
    WS_MF, WS_P, WS_H1 = 0x7800, 2*RS, 2*RS + 5120
    WS_O = 3*RS; WS_LAM = WS_O + 256
    CLRK = (35, 32, 31, OS // 16)
    if PG == 15: WS_MF = MFB; CLRK = (30, 32, 31, OS // 16)
    if clrk: CLRK = clrk
    if cun == 2: CLRK = (30, 32, 20, OS // 16)
    C2D = 0x1A0000 - WS_P
    WS_END = (3 << PG) + (WS_P + C2D if c2 else max(3*RS, WS_MF)) + 0x8000
    SO = 's59' if 'redir' in skip else '0'
    uid = [0]
    def newlabel(p):
        uid[0] += 1; return f"L_{p}{uid[0]}"
    def stamp(i):
        if (diag and (only is None or i in only)) or (amp and i == amp[0]):
            A(f"s_memrealtime s[{64+2*i}:{65+2*i}]"); A("s_waitcnt lgkmcnt(0)")
    def cy(i):
        if cyc: A(f"s_memtime s[{64+2*i}:{65+2*i}]")
    def cnt(i):
        if diag:
            A(f"s_mul_i32 s34, s35, 100"); A(f"s_add_u32 s34, s34, s64"); A(f"v_writelane_b32 v198, s34, {i}")
    def waitprog(n):
        if not n: return
        A(f"v_mov_b32 v22, {L_PROG}")
        rk = bal and n in bm and n not in gm
        gi = list(gm.keys()).index(n) if n in gm else list(gm.values()).index(n) if n in gm.values() else None
        if gi is not None:
            A("v_bfe_u32 v254, v0, 3, 2"); A(f"v_lshlrev_b32 v254, {PG}, v254"); A("v_and_b32 v253, 7, v0"); A("v_lshl_add_u32 v254, v253, 2, v254")
            A(f"v_add_u32 v254, {WS_P + 16384 + 6912 + 256*gi}, v254"); A("v_mov_b32 v253, 0")
        if rk:
            A("s_and_b32 s34, s60, 3"); A(f"s_lshl_b32 s34, s34, {PG}"); A("s_lshr_b32 s35, s60, 2"); A("s_lshl_b32 s35, s35, 7"); A("s_add_u32 s34, s34, s35")
            A(f"s_add_u32 s34, s34, {WS_P + 6912 + 256*bm.index(n)}"); A("v_and_b32 v252, 31, v0"); A("v_lshl_add_u32 v252, v252, 2, s34"); A("v_mov_b32 v253, 0")
        poll(["ds_read_b32 v23, v22"], [], 0, wait="lgkmcnt(0)", sleep=2, cmp=f"v_cmp_gt_u32 vcc, {n}, v23")
        if rk:
            if xr and bm.index(n) > 0: A("s_movk_i32 s35, 7936"); A("buffer_load_dword v249, v252, s[44:47], s35 offen sc1")
            A("buffer_load_dword v251, v252, s[44:47], 0 offen sc1")
            A("s_lshl_b64 exec, 1, s61"); A("buffer_store_dword v253, v252, s[44:47], 0 offen"); A("s_mov_b64 exec, -1")
        if n in gm.values():
            lb = newlabel("bc")
            A("s_and_b32 s34, s61, 7"); A(f"s_cbranch_scc1 {lb}")
            A("s_add_u32 s34, s61, s60"); A("s_lshl_b64 exec, 1, s34"); A("buffer_store_dword v253, v254, s[44:47], 0 offen sc1"); A("s_mov_b64 exec, -1")
            A.label(lb)
        if n in gm:
            for p_ in range(3):
                A(f"s_mov_b32 s34, {WS_P + 16384 + 6912 + 256*gi + (p_ << PG)}"); A(f"s_load_dwordx8 s[{64+8*p_}:{71+8*p_}], s[44:45], s34")
            A("s_waitcnt lgkmcnt(0)")
            for r_ in range(65, 88): A(f"s_add_u32 s64, s64, s{r_}")
            A("s_add_u32 s64, s64, 24"); A("s_mul_i32 s64, s64, 43"); A("s_lshr_b32 s64, s64, 5")
    def putrank(n):
        if bal and n in bm:
            A("v_cmp_ne_u32 vcc, -1, v251"); A("v_mov_b32 v248, v252"); A(f"v_mov_b32 v252, {L_RANK}"); A("s_bcnt1_i32_b32 s34, vcc_lo")
            A("s_mov_b32 s91, s34")
            if xr and bm.index(n) > 0:
                tab = sum((v & 15) << (4*i) for i, v in enumerate(xr))
                A("v_readfirstlane_b32 s35, v249"); A("s_add_u32 s35, s35, 1"); A("s_min_u32 s35, s35, 7"); A("s_lshl_b32 s35, s35, 2"); A(f"s_lshr_b32 s35, {tab}, s35"); A("s_and_b32 s35, s35, 15"); A("s_add_u32 s34, s34, s35")
            if n in gm: A("s_mov_b32 s34, s64")
            if gmix and n in gm: A("s_add_u32 s34, s34, s95"); A("s_lshr_b32 s34, s34, 1")
            if gmix: A("s_mov_b32 s95, s34")
            if any(rk):
                A("s_cmp_ge_u32 s60, 4"); A(f"s_cselect_b32 s35, {rk[1]}, {rk[0]}"); A("s_cmp_ge_u32 s61, 20"); A("s_cselect_b32 s35, s35, 0"); A("s_add_u32 s34, s34, s35")
            A("v_mov_b32 v251, s34")
            A("s_mov_b64 exec, 1"); A("ds_write_b32 v252, v251"); A("s_mov_b64 exec, -1")
    def dierank(n):
        if bal and xr and n in bm and bm.index(n) < len(bm) - 1:
            lb = newlabel("dr")
            A(f"s_cmp_lg_u32 s91, {xm}"); A(f"s_cbranch_scc1 {lb}")
            if xs & 1:
                A(f"s_mov_b32 s34, {WS_P + 16384 + 6912 + 256*bm.index(n)}"); A("s_mov_b32 s91, 1")
                A("s_atomic_add s91, s[44:45], s34 glc"); A("s_waitcnt lgkmcnt(0)")
            elif xs & 4: A("s_mov_b32 s91, 0")
            else:
                A(f"v_mov_b32 v251, {WS_P + 16384 + 6912 + 256*bm.index(n)}"); A("v_mov_b32 v249, 1")
                A("s_mov_b64 exec, 1"); A("buffer_atomic_add v249, v251, s[44:47], 0 offen sc0 sc1"); A("s_waitcnt vmcnt(0)")
                A("v_readfirstlane_b32 s91, v249")
            A("s_mov_b64 exec, 0xffffffff" if xs & 2 else "s_mov_b64 exec, 1"); A("v_mov_b32 v249, s91")
            A("s_movk_i32 s35, 8192"); A("buffer_store_dword v249, v248, s[44:47], s35 offen"); A("s_mov_b64 exec, -1")
            A.label(lb)
    def oddcopy(bit, always=False):
        if c2 & bit:
            if always: A(f"s_add_u32 s34, s34, {C2D}")
            else: A("s_and_b32 s35, s60, 1"); A(f"s_mul_i32 s35, s35, {C2D}"); A("s_add_u32 s34, s34, s35")
    def padhere(k):
        A.label(f"L_pad{k}"); A(f"s_branch L_back{k}")
    def touch_(k):
        A(f"s_branch L_pad{k}"); A.label(f"L_back{k}")
    def republish():
        A("s_mov_b64 exec, -1"); A("v_lshlrev_b32 v243, 4, v0"); A(f"v_add_u32 v243, {L_OC}, v243")
        A("ds_read_b96 v[240:242], v243"); A("s_waitcnt lgkmcnt(0)")
        A("buffer_store_dword v240, v242, s[44:47], 0 offen sc1"); A("buffer_store_dword v241, v242, s[44:47], 0 offen offset:256 sc1")
    def timeout_hook(n):
        lb = newlabel("tmo")
        A(f"s_cmp_lg_u32 s35, {n}"); A(f"s_cbranch_scc1 {lb}")
        republish()
        A.label(lb)
    def maxtree(dst, regs):
        out = []
        regs = list(regs)
        if len(regs) == 1: return [f"v_mov_b32 v{dst}, v{regs[0]}"]
        if len(regs) == 2: return [f"v_max_u32 v{dst}, v{regs[0]}, v{regs[1]}"]
        out.append(f"v_max3_u32 v{dst}, v{regs[0]}, v{regs[1]}, v{regs[2]}"); regs = regs[3:]
        while regs:
            if len(regs) >= 2: out.append(f"v_max3_u32 v{dst}, v{dst}, v{regs[0]}, v{regs[1]}"); regs = regs[2:]
            else: out.append(f"v_max_u32 v{dst}, v{dst}, v{regs[0]}"); regs = regs[1:]
        return out
    def poll(loads, regs, tmp, wait="vmcnt(0)", sleep=0, extra=None, cmp=None, first=None, tmo=0):
        lp = newlabel("poll"); dn = newlabel("done"); mid = newlabel("mid")
        A("s_mov_b32 s35, 0")
        if first:
            for l in loads: A(l)
            first()
            A(f"s_branch {mid}")
        A.label(lp)
        for l in loads: A(l)
        if first: A.label(mid)
        A(f"s_add_u32 s35, s35, 1")
        A(f"s_waitcnt {wait}")
        chk = maxtree(tmp, regs) if cmp is None else []
        if extra:
            per = max(1, math.ceil(len(chk) / len(extra)))
            for e in extra:
                A(e)
                for c in chk[:per]: A(c)
                chk = chk[per:]
        for c in chk: A(c)
        A(cmp if cmp else f"v_cmp_eq_u32 vcc, -1, v{tmp}")
        A(f"s_cbranch_vccz {dn}")
        snap = list(A.hist)
        if tmo and loc: timeout_hook(tmo)
        if sleep: A(f"s_sleep {sleep}")
        A(f"s_cmp_lt_u32 s35, {spin}")
        if extra: A("s_nop 7")
        A(f"s_cbranch_scc1 {lp}")
        A.label(dn)
        A.hist = snap
    def allred_rows(op, v, t):
        for sw in ("v_permlane16_swap_b32", "v_permlane32_swap_b32"):
            for x, y in zip(v, t): A(f"v_mov_b32 v{y}, v{x}")
            for x, y in zip(v, t): A(f"{sw} v{x}, v{y}")
            for x, y in zip(v, t): A(f"{op} v{x}, v{x}, v{y}")
    def srd(r, lo, hi, n):
        A(f"s_mov_b32 s{r}, s{lo}"); A(f"s_and_b32 s{r+1}, s{hi}, 0xffff"); A(f"s_mov_b32 s{r+2}, {n}"); A(f"s_mov_b32 s{r+3}, 0x20000")
    def diagmask(m0, t0, t1):
        A(f"v_and_b32 v{t0}, 1, v0"); A(f"v_lshlrev_b32 v{t0}, 4, v{t0}")
        A(f"v_mov_b32 v{t1}, 0xffff"); A(f"v_lshlrev_b32 v{t0}, v{t0}, v{t1}")
        A(f"v_bfe_u32 v{t1}, v0, 1, 2")
        for m in range(4):
            A(f"v_cmp_eq_u32 vcc, {m}, v{t1}"); A(f"v_cndmask_b32 v{m0+m}, 0, v{t0}, vcc")
    def unpack(dst, src):
        for q in range(2):
            A(f"v_lshlrev_b32 v{dst+2*q}, 16, v{src+q}"); A(f"v_and_b32 v{dst+2*q+1}, 0xffff0000, v{src+q}")
    def pack2(dst, src):
        A(f"v_cvt_pk_bf16_f32 v{dst}, v{src}, v{src+1}"); A(f"v_cvt_pk_bf16_f32 v{dst+1}, v{src+2}, v{src+3}")
        A(f"v_min_u32 v{dst}, -2, v{dst}"); A(f"v_min_u32 v{dst+1}, -2, v{dst+1}")
    def ln_scalars(s1, s2, t):
        A(f"v_mul_f32 v{t}, {hex(f2u(1/640))}, v{s1}"); A(f"v_mul_f32 v{s2}, {hex(f2u(1/640))}, v{s2}")
        A(f"v_fma_f32 v{s2}, -v{t}, v{t}, v{s2}"); A(f"v_max_f32 v{s2}, 0, v{s2}"); A(f"v_add_f32 v{s2}, {hex(f2u(1e-5))}, v{s2}")
        A(f"v_rsq_f32 v{s1}, v{s2}"); A(f"v_mul_f32_e64 v{s2}, -v{t}, v{s1}")
    def role_decode():
        e = newlabel("rd"); b_ = newlabel("rd")
        A("s_mov_b32 s63, 0"); A("s_mov_b32 s62, s61"); A("s_cmp_lt_u32 s61, 20"); A(f"s_cbranch_scc1 {e}")
        if conc:
            A("s_mul_i32 s62, s60, 12"); A("s_add_u32 s62, s62, s61"); A("s_sub_u32 s62, s62, 20")
            A("s_mov_b32 s63, 1"); A("s_cmp_lt_u32 s62, 54"); A(f"s_cbranch_scc1 {e}")
            A("s_cmp_lt_u32 s62, 56"); A("s_cselect_b32 s63, 3, 2"); A("s_sub_u32 s62, s62, 56")
            A.label(e)
            return
        A("s_mov_b32 s63, 2"); A("s_lshl_b32 s62, s60, 2"); A("s_and_b32 s34, s61, 3"); A("s_add_u32 s62, s62, s34")
        A("s_cmp_lt_u32 s61, 24"); A(f"s_cbranch_scc1 {e}")
        A("s_mov_b32 s63, 1"); A("s_cmp_ge_u32 s60, 2"); A(f"s_cbranch_scc1 {b_}")
        A("s_cmp_ge_u32 s61, 28"); A(f"s_cbranch_scc1 {e}")
        A("s_mov_b32 s63, 2"); A("s_add_u32 s62, s62, 32"); A(f"s_branch {e}")
        A.label(b_)
        A("s_lshl_b32 s62, s60, 3"); A("s_add_u32 s62, s62, s61"); A("s_sub_u32 s62, s62, 32")
        A("s_cmp_ge_u32 s62, 54"); A("s_cselect_b32 s63, 3, 1")
        A.label(e)
    def tail_decode(pfx):
        A("s_mov_b32 s62, s61"); A("s_cmp_lt_u32 s61, 20"); A(f"s_cbranch_scc1 {pfx}_wo")
        A("s_lshl_b32 s62, s60, 2"); A("s_and_b32 s34, s61, 3"); A("s_add_u32 s62, s62, s34")
        A("s_cmp_lt_u32 s61, 24"); A(f"s_cbranch_scc1 {pfx}_w2")
        A("s_cmp_ge_u32 s60, 2"); A(f"s_cbranch_scc1 {pfx}_w1b")
        A("s_cmp_ge_u32 s61, 28"); A(f"s_cbranch_scc1 {pfx}_w1")
        A("s_add_u32 s62, s62, 32"); A(f"s_branch {pfx}_w2")
        A.label(f"{pfx}_w1b")
        A("s_lshl_b32 s62, s60, 3"); A("s_add_u32 s62, s62, s61"); A("s_sub_u32 s62, s62, 32")
        A("s_cmp_ge_u32 s62, 54"); A(f"s_cbranch_scc1 {pfx}_none")
        A.label(f"{pfx}_w1")

    A.raw(HEADER.rstrip())
    A.raw(f"; @launch grid=(256,1,1) block=(512,1,1) lds={L_END}")
    for l in DOC.strip().splitlines(): A.raw("; " + l)
    A.raw('.amdgcn_target "amdgcn-amd-amdhsa--gfx950"'); A.raw(".text")
    A.raw(f".globl {NAME}_kernel"); A.raw(".p2align 8"); A.raw(f".type {NAME}_kernel,@function")
    A.label(f"{NAME}_kernel")
    if amp or diag: A("s_memrealtime s[64:65]")
    A("s_load_dwordx16 s[4:19], s[0:1], 0"); A("s_load_dwordx8 s[20:27], s[0:1], 64")
    A("s_cmpk_ge_u32 s2, 256"); A("s_cbranch_scc1 L_exit")
    A("v_lshrrev_b32 v1, 6, v0"); A("v_and_b32 v0, 63, v0"); A("v_readfirstlane_b32 s3, v1")
    A("v_lshrrev_b32 v10, 3, v0"); A("v_and_b32 v11, 7, v0"); A("v_lshlrev_b32 v11, 4, v11")
    A("s_lshr_b32 s50, s2, 2"); A("s_and_b32 s51, s2, 3"); A("s_lshl_b32 s34, s50, 7")
    A("s_and_b32 s49, s2, 31"); A("s_lshl_b32 s49, s49, 8"); A("s_and_b32 s35, s2, 0x80"); A("s_add_u32 s49, s49, s35"); A("s_bfe_u32 s53, s2, 0x20005")
    A("s_cmpk_lt_u32 s2, 240"); A(f"s_cselect_b32 s38, {640*7680}, 0"); A("s_movk_i32 s48, 7680"); A("s_mul_i32 m0, s3, 5120"); A("s_and_b32 s52, s3, 3")
    A("s_cmp_ge_u32 s3, 4"); A("s_cselect_b32 s34, s49, s34"); A("s_cselect_b32 s35, s53, s51"); A("s_cmovk_i32 s48, 8192"); A(f"s_cmov_b32 s38, {640*8192}")
    A("s_mul_i32 s35, s35, 160"); A("s_mul_i32 s52, s52, 40"); A("v_add_u32 v10, s35, v10"); A("v_add_u32 v10, s52, v10"); A("v_mad_u32_u24 v8, v10, s48, v11")
    A("s_mul_i32 s48, s48, 8"); A("s_mov_b32 s39, 0x20000")
    A("s_waitcnt lgkmcnt(0)")
    A("s_cselect_b32 s36, s10, s26"); A("s_cselect_b32 s37, s11, s27")
    for k in range(5):
        A(f"buffer_load_dwordx4 v8, s[36:39], s34 offen {wflag} lds")
        if k < 4: A("s_add_u32 m0, m0, 1024"); A("s_add_u32 s34, s34, s48")
    A("s_load_dwordx4 s[28:31], s[0:1], 96")
    A("s_load_dwordx2 s[32:33], s[0:1], 112")
    if diag:
        for i in range(66, 96, 2): A(f"s_mov_b64 s[{i}:{i+1}], 0")
    A("s_and_b32 s60, s2, 7"); A("s_lshr_b32 s61, s2, 3")
    A("s_mov_b32 s39, 0x20000"); A("s_mov_b32 s43, 0x20000"); A(f"s_mov_b32 s46, {WS_END}"); A("s_mov_b32 s47, 0x20000")
    A("s_cmp_lg_u32 s3, 0"); A("s_cbranch_scc1 L_stream")
    A("s_setprio 3")
    A("v_and_b32 v12, 3, v0"); A("v_bfe_u32 v13, v0, 2, 2"); A("v_lshrrev_b32 v14, 4, v0")
    A("v_mul_u32_u24 v16, 1280, v12"); A("v_lshl_add_u32 v18, v14, 4, v16"); A("s_mul_i32 s34, s51, 320"); A("v_add_u32 v19, s34, v18")
    A("s_sub_u32 s52, s50, 10")
    A("s_waitcnt lgkmcnt(0)")
    A(f"s_add_u32 s44, s32, {WB}"); A("s_addc_u32 s45, s33, 0")
    A("s_cmp_ge_u32 s2, 240")
    A("s_cbranch_scc1 L_clear")
    C0 = 32; X0 = 52; XP = 72
    def cx_loads():
        A("s_cmp_ge_u32 s52, 10"); A("s_cbranch_scc1 L_nox")
        A("v_lshl_add_u32 v18, v13, 6, v18")
        for t in range(5): A(f"global_load_dwordx4 v[{X0+4*t}:{X0+4*t+3}], v18, s[4:5] offset:{256*t}")
        A("s_lshl_b32 s34, s52, 7"); A("v_lshl_add_u32 v16, v13, 5, v16"); A("v_lshl_add_u32 v16, v14, 3, v16"); A("v_add_u32 v16, s34, v16")
        A(f"global_load_dwordx2 v[{XP}:{XP+1}], v16, s[4:5]")
        A.label("L_nox")
        for t in range(5): A(f"global_load_dwordx4 v[{C0+4*t}:{C0+4*t+3}], v19, s[24:25] offset:{64*t}")
    if cpos < 2: cx_loads()
    def dma_loop(vreg, n, lds0, step, flag, unroll=4, win=0):
        lp = newlabel("dma")
        A(f"s_mov_b32 m0, {lds0}"); A("s_mov_b32 s34, 0")
        A.label(lp)
        for k in range(unroll):
            if win: A(f"s_waitcnt vmcnt({win-1})")
            A(f"buffer_load_dwordx4 v{vreg}, s[36:39], s34 offen {flag} lds")
            A("s_add_u32 m0, m0, 1024"); A(f"s_add_u32 s34, s34, {step}")
        A(f"s_cmp_lt_u32 s34, {n*step}"); A(f"s_cbranch_scc1 {lp}")
    def warm(r=56, dst=76):
        A(f"s_getpc_b64 s[{r}:{r+1}]"); lab = newlabel("pc"); A.label(lab)
        A(f"s_sub_u32 s{r}, s{r}, {lab}-{NAME}_kernel"); A(f"s_subb_u32 s{r+1}, s{r+1}, 0")
        A("s_lshl_b32 s34, s61, 10"); A("v_lshl_add_u32 v9, v0, 4, s34")
        A("v_min_u32 v9, L_codeend-" + NAME + "_kernel-16, v9")
        A(f"global_load_dwordx4 v[{dst}:{dst+3}], v9, s[{r}:{r+1}]")
    def init_bar():
        A(f"v_lshlrev_b32 v1, 2, v0"); A(f"v_add_u32 v1, {L_QV}, v1"); A("v_mov_b32 v2, -1"); A("v_mov_b32 v3, 0")
        A("ds_write_b32 v1, v2"); A("ds_write_b32 v1, v2 offset:256"); A("ds_write_b32 v1, v3 offset:512"); A("ds_write_b32 v1, v3 offset:768")
        A("s_waitcnt lgkmcnt(0)")
        A("s_barrier")
    NT = (7 if touch else 0) - (1 if wmode in (0, 2, 3) else 0)
    def wq_issue():
        if wmode == 1: warm()
        if wmode == 3:
            A("s_getpc_b64 s[56:57]"); lab = newlabel("pc"); A.label(lab)
            A(f"s_sub_u32 s56, s56, {lab}-{NAME}_kernel"); A("s_subb_u32 s57, s57, 0")
            A("s_lshl_b32 s34, s61, 10"); A("s_min_u32 s34, s34, (L_codeend-" + NAME + "_kernel-1024)&0xffc0"); A("s_add_u32 s56, s56, s34"); A("s_addc_u32 s57, s57, 0")
            for i in range(16): A(f"s_load_dword s59, s[56:57], {64*i}")
        if touch:
            A("v_lshlrev_b32 v9, 21, v0")
            A("s_mov_b64 exec, 7"); A("global_load_dword v76, v9, s[12:13]")
            A("s_mov_b64 exec, 3"); A("global_load_dword v76, v9, s[16:17]"); A("global_load_dword v76, v9, s[20:21]")
            A("s_mov_b64 exec, 1")
            for p in (28, 18, 22, 4): A(f"global_load_dword v76, v9, s[{p}:{p+1}]")
            A("s_mov_b64 exec, -1")
        A("v_lshl_add_u32 v15, v14, 3, v13"); A("v_lshlrev_b32 v15, 7, v15"); A("v_lshl_add_u32 v15, v12, 3, v15")
    if wqfirst: wq_issue(); init_bar()
    else:
        init_bar()
        if cpos == 2: cx_loads()
        wq_issue()
    stamp(1)
    A("s_waitcnt vmcnt(0)")
    A(f"s_mov_b32 s34, {hex(f2u(-math.log2(math.e)))}")
    for k in range(0, 20, 2):
        r = [C0 + k, C0 + k + 1]
        t = [20, 21, 22, 23]; e = [24, 25, 26, 27]
        unpack(20, C0 + k)
        for q in range(4): A(f"v_mul_f32 v{e[q]}, s34, v{t[q]}")
        for q in range(4): A(f"v_exp_f32 v{e[q]}, v{e[q]}")
        for q in range(4): A(f"v_add_f32 v{e[q]}, 1.0, v{e[q]}")
        for q in range(4): A(f"v_rcp_f32 v{e[q]}, v{e[q]}")
        for q in range(4): A(f"v_mul_f32 v{e[q]}, v{t[q]}, v{e[q]}")
        for q in range(2): A(f"v_cvt_pk_bf16_f32 v{r[q]}, v{e[2*q]}, v{e[2*q+1]}")
    A("s_cmp_ge_u32 s52, 10"); A("s_cbranch_scc1 L_nostats")
    A("v_mov_b32 v20, 0"); A("v_mov_b32 v21, 0"); A("v_mov_b32 v22, 0x3f803f80")
    for k in range(20):
        A(f"v_dot2c_f32_bf16 v20, v{X0+k}, v22"); A(f"v_dot2c_f32_bf16 v21, v{X0+k}, v{X0+k}")
    for pat in ("row_ror:4", "row_ror:8"):
        A(f"v_add_f32_dpp v20, v20, v20 {pat} {FULL}"); A(f"v_add_f32_dpp v21, v21, v21 {pat} {FULL}")
    allred_rows("v_add_f32", [20, 21], [22, 23])
    ln_scalars(20, 21, 22)
    unpack(24, XP)
    for q in range(4): A(f"v_fma_f32 v{24+q}, v{24+q}, v20, v21")
    A.label("L_nostats")
    AC = 80; WF = 96
    def wread(lds0):
        for t in range(5):
            for tau in range(4):
                w = WF + 16 * t + 4 * tau
                A(f"ds_read_b64_tr_b16 v[{w}:{w+1}], v15 offset:{lds0 + 4096*t + 32*tau}")
                A(f"ds_read_b64_tr_b16 v[{w+2}:{w+3}], v15 offset:{lds0 + 4096*t + 32*tau + 512}")
            if t < 4: A("s_waitcnt lgkmcnt(7)")
        A("s_waitcnt lgkmcnt(0)")
    pass
    stamp(2)
    wread(L_WMOD)
    for t in range(5):
        for tau in range(4):
            c = f"v[{AC+4*tau}:{AC+4*tau+3}]"; w = WF + 16 * t + 4 * tau
            A(f"v_mfma_f32_16x16x32_bf16 {c}, v[{w}:{w+3}], v[{C0+4*t}:{C0+4*t+3}], {c if t else 0}")
    A("s_cmp_ge_u32 s50, 20"); A("s_cbranch_scc1 L_adr_rest")
    A("s_cmp_lt_u32 s50, 10"); A("s_cselect_b32 s34, 5120, 0"); A("s_cselect_b32 s35, s50, s52")
    A("s_lshl_b32 s35, s35, 9"); A("s_add_u32 s34, s34, s35"); A(f"s_lshl_b32 s35, s51, {PG}"); A("s_add_u32 s34, s34, s35")
    A("v_lshrrev_b32 v19, 1, v14"); A("v_lshl_add_u32 v19, v13, 1, v19"); A("v_lshlrev_b32 v19, 6, v19"); A("v_lshl_add_u32 v19, v12, 4, v19")
    A("v_and_b32 v20, 1, v14"); A("v_lshl_add_u32 v19, v20, 3, v19")
    A("s_branch L_adr_done")
    A.label("L_adr_rest")
    A(f"s_lshl_b32 s34, s51, {PG}"); A("s_lshl_b32 s35, s50, 9"); A("s_add_u32 s34, s34, s35"); A(f"s_add_u32 s34, s34, {WS_MR - 20*512}")
    A("v_lshlrev_b32 v19, 7, v12"); A("v_lshl_add_u32 v19, v13, 5, v19"); A("v_lshl_add_u32 v19, v14, 3, v19")
    A("s_nop 3")
    A.label("L_adr_done")
    A("v_add_u32 v19, s34, v19")
    for u in range(1, 4):
        for r in range(4): A(f"v_mov_b32_dpp v{AC+r}, v{AC+4*u+r} quad_perm:[0,1,2,3] row_mask:0xf bank_mask:{hex(1<<u)}")
    A("s_cmp_ge_u32 s52, 10"); A("s_cbranch_scc1 L_noz")
    for r in range(4): A(f"v_add_f32 v{AC+r}, 0x3e800000, v{AC+r}")
    for r in range(4): A(f"v_mul_f32 v{AC+r}, v{AC+r}, v{24+r}")
    A.label("L_noz")
    pack2(20, AC)
    def xoff():
        A("s_getreg_b32 s97, hwreg(HW_REG_XCC_ID, 0, 4)"); A("s_sub_u32 s97, s97, s2"); A("s_and_b32 s97, s97, 7"); A("s_add_u32 s97, s97, 1")
    def pollflags():
        waitprog(mkf)
        if marg: stamp(2)
        A("v_and_b32 v22, 15, v0"); A("v_lshlrev_b32 v22, 2, v22")
        poll(["global_load_dword v23, v22, s[30:31] offset:128 sc1"], [], 0, sleep=sl[0], cmp="v_cmp_eq_u32 vcc, 0, v23")
        xoff(); A("v_cmp_ne_u32 vcc, s97, v23"); A("s_mov_b32 s97, vcc_lo")
        cnt(0)
    pollflags()
    stamp(3)
    if 'redir' in skip: A("s_mov_b32 s59, 0x100000")
    if 'p1st' not in skip: A(f"buffer_store_dwordx2 v[20:21], v19, s[44:47], {SO} offen {pst}")
    A("s_branch L_p2")
    if pcl:
        A.label("L_clear_s")
        A("s_waitcnt lgkmcnt(0)"); A(f"s_add_u32 s44, s32, {WB}"); A("s_addc_u32 s45, s33, 0")
    A.label("L_clear"); A("; ---- clearing workgroups (waves 0..3)")
    A("s_sub_u32 s55, s2, 240"); A("s_lshr_b32 s34, s55, 2"); A("s_lshl_b32 s35, s34, 3"); A(f"s_lshr_b32 s54, {sum(k << (8*i) for i, k in enumerate(CLRK))}, s35"); A("s_and_b32 s54, s54, 0xff"); A("s_lshl_b32 s54, s54, 10")
    A(f"s_mul_i32 s34, s34, {RS}"); A(f"s_lshl_b32 s35, s51, {PG}"); A("s_add_u32 s34, s34, s35"); A("v_lshl_add_u32 v9, v0, 4, s34")
    for r in range(4): A(f"v_mov_b32 v{4+r}, -1")
    A("s_lshl_b32 s34, s3, 10")
    if clrk: A("s_cmp_eq_u32 s54, 0"); A("s_cbranch_scc1 L_clrend")
    A.label("L_clrloop")
    for k in range(cun if 'clr' not in skip else 0): A(f"buffer_store_dwordx4 v[4:7], v9, s[44:47], s34 offen offset:{1024*k} {cst}")
    A(f"s_add_u32 s34, s34, {4096 if pcl else 1024}"); A("s_cmp_lt_u32 s34, s54"); A("s_cbranch_scc1 L_clrloop")
    A.label("L_clrend")
    if pcl: A("s_cmp_lg_u32 s3, 0"); A("s_cbranch_scc1 L_stream2")
    if PG == 15:
        A("s_cmp_ge_u32 s55, 4"); A("s_cbranch_scc1 L_clrend2")
        for k in range(5): A(f"s_mov_b32 s34, {WS_MF + 1024*k}"); A(f"buffer_store_dwordx4 v[4:7], v9, s[44:47], s34 offen {cst}")
        A.label("L_clrend2")
    if c2:
        A("s_lshr_b32 s35, s55, 2"); A(f"s_mul_i32 s35, s35, {8192 - RS}")
        for k in range(5 if c2 == 2 else 0, 7): A(f"s_add_u32 s34, s35, {WS_P + C2D + 1024*k}"); A(f"buffer_store_dwordx4 v[4:7], v9, s[44:47], s34 offen {cst}")
    init_bar()
    A("s_lshl_b32 s34, s55, 2"); A("v_mov_b32 v24, s34"); xoff()
    A("v_mov_b32 v25, s97"); A("v_mov_b32 v19, v9"); A("v_readfirstlane_b32 s90, v9"); A("s_mov_b32 s91, 0")
    A("s_waitcnt vmcnt(0)")
    A("s_mov_b64 exec, 1"); A("global_store_dword v24, v25, s[30:31] offset:128 sc1"); A("s_mov_b64 exec, -1")
    stamp(1)
    if amps is not None:
        A("v_mov_b32 v25, s64"); A("s_mov_b64 exec, 1"); A("global_store_dword v24, v25, s[30:31] offset:192 sc1"); A("s_mov_b64 exec, -1")
    wq_issue()
    if nv < 16: A(f"s_cmp_ge_u32 s55, {nv}"); A("s_cbranch_scc1 L_novote")
    for t in range(ntr):
        A(f"s_add_u32 s34, s90, {1024*t}"); A(f"s_add_u32 s35, s90, {1024*t + 8192}"); A("s_mov_b64 s[88:89], 0")
        ld = ["s_load_dword s88, s[44:45], s34", "s_load_dword s89, s[44:45], s35"]
        A(ld[t & 1]); A(ld[1 - (t & 1)])
        A("s_waitcnt lgkmcnt(1)")
        A("s_cmp_eq_u32 s88, 0" if t & 1 else "s_cmp_lg_u32 s89, 0"); A("s_addc_u32 s91, s91, 0")
        A("s_waitcnt lgkmcnt(0)")
    A("s_getreg_b32 s34, hwreg(HW_REG_XCC_ID, 2, 1)"); A(f"s_sub_u32 s35, {ntr // 2}, s91"); A(f"s_sub_u32 s91, s91, {ntr // 2}"); A("s_cmp_eq_u32 s34, 0"); A("s_cselect_b32 s91, s91, s35")
    A("v_mov_b32 v25, s91")
    A("s_mov_b64 exec, 1"); A("global_store_dword v24, v25, s[30:31] sc1"); A("s_mov_b64 exec, -1")
    A.label("L_novote")
    pollflags()
    stamp(3)
    A.label("L_p2"); A("; ---- q partials")
    A("v_mov_b32 v199, v19")
    if WQW:
        dma_loop(16, 20, L_WQ, 8 * 8192, wflag, unroll=1, win=WQW)
        A("s_waitcnt vmcnt(0)")
    wread(L_WQ)
    A("s_mul_i32 s34, s53, 1280"); A(f"v_lshlrev_b32 v19, {PG}, v13"); A("v_lshl_add_u32 v19, v14, 6, v19"); A("v_lshl_add_u32 v19, v12, 4, v19"); A("v_add_u32 v19, s34, v19")
    A("s_movk_i32 s48, 5120")
    A(f"s_mov_b32 s56, {1 << PG}"); A(f"s_mov_b32 s57, {2 << PG}"); A(f"s_mov_b32 s58, {3 << PG}")
    A("s_sub_u32 s34, s2, 80"); A("s_cmp_lt_u32 s34, 160"); A("s_cselect_b32 s54, 1, 0"); A("s_and_b32 s34, s2, 3"); A("s_cselect_b32 s54, 0, s54")
    for r in range(180, 188): A(f"v_mov_b32 v{r}, 0")
    waitprog(mk[0])
    if marg: stamp(8)
    hl = [f"buffer_load_dwordx4 v[{C0+4*k}:{C0+4*k+3}], v19, s[44:47], {'s48' if k & 1 else '0'} offen offset:{256*(k>>1)} {pld}" for k in range(10)]
    hl += ["s_cmp_eq_u32 s54, 0", "s_cbranch_scc1 L_hskip"] + [f"buffer_load_dwordx2 v[{180+2*u}:{181+2*u}], v199, s[44:47], {['0','s56','s57','s58'][u]} offen {pld}" for u in range(4)] + ["L_hskip:"]
    if 'hg' in skip: poll(hl[:1], range(C0, C0 + 4), 20, sleep=sl[1])
    else: poll(hl, list(range(C0, C0 + 40)) + list(range(180, 188)), 20, sleep=sl[1])
    cnt(1); putrank(mk[0])
    stamp(4)
    for k in range(10):
        for tau in range(4):
            c = f"v[{AC+4*tau}:{AC+4*tau+3}]"; w = WF + 16 * (k >> 1) + 4 * tau
            A(f"v_mfma_f32_16x16x32_bf16 {c}, v[{w}:{w+3}], v[{C0+4*k}:{C0+4*k+3}], {c if k else 0}")
    A(f"s_lshl_b32 s34, s53, {PG}"); A("s_lshl_b32 s35, s49, 2"); A("s_add_u32 s34, s34, s35"); A(f"s_add_u32 s34, s34, {WS_QP}")
    A("v_lshlrev_b32 v19, 7, v12"); A("v_lshl_add_u32 v19, v13, 5, v19"); A("v_lshl_add_u32 v19, v14, 3, v19"); A("v_add_u32 v19, s34, v19")
    for r in range(4):
        A(f"v_add_f32_dpp v{20+r}, v{AC+r}, v{AC+r} row_ror:8 row_mask:0xf bank_mask:0x3")
        A(f"v_add_f32_dpp v{24+r}, v{AC+4+r}, v{AC+4+r} row_ror:8 row_mask:0xf bank_mask:0x3")
    for r in range(4):
        A(f"v_add_f32_dpp v{20+r}, v{AC+8+r}, v{AC+8+r} row_ror:8 row_mask:0xf bank_mask:0xc")
        A(f"v_add_f32_dpp v{24+r}, v{AC+12+r}, v{AC+12+r} row_ror:8 row_mask:0xf bank_mask:0xc")
    for r in range(4): A(f"v_add_f32_dpp v{28+r}, v{20+r}, v{20+r} row_shl:4 row_mask:0xf bank_mask:0x5")
    for r in range(4): A(f"v_add_f32_dpp v{28+r}, v{24+r}, v{24+r} row_shr:4 row_mask:0xf bank_mask:0xa")
    pack2(20, 28)
    if 'redir' in skip: A("s_mov_b32 s59, 0x100000")
    if 'qst' not in skip: A(f"buffer_store_dwordx2 v[20:21], v19, s[44:47], {SO} offen {qfl}")
    if marg: stamp(10)
    A("s_cmp_eq_u32 s54, 0"); A("s_cbranch_scc1 L_nomf")
    unpack(24, 180)
    for u in range(1, 4):
        unpack(28, 180 + 2*u)
        for r in range(4): A(f"v_add_f32 v{24+r}, v{24+r}, v{28+r}")
    pack2(22, 24)
    A("s_sub_u32 s34, s50, 20"); A("s_lshl_b32 s35, s34, 9"); A("v_subrev_u32 v199, s35, v199")
    A("s_lshr_b32 s35, s34, 2"); A("s_lshl_b32 s35, s35, 9"); A("s_and_b32 s34, s34, 3"); A(f"s_lshl_b32 s34, s34, {PG}"); A("s_add_u32 s34, s34, s35"); A(f"s_add_u32 s34, s34, {WS_MF - WS_MR}")
    A("v_add_u32 v199, s34, v199")
    if 'mf' not in skip: A(f"buffer_store_dwordx2 v[22:23], v199, s[44:47], 0 offen {pst}")
    A.label("L_nomf")
    def kv_srds():
        A("s_and_b32 s34, s2, 127"); A("s_lshl_b32 s34, s34, 21"); A("s_lshr_b32 s35, s2, 7"); A("s_lshl_b32 s35, s35, 18")
        A("s_add_u32 s34, s34, s35"); A(f"s_add_u32 s34, s34, {6144*256}")
        A("s_mov_b32 s38, 0x40000"); A("s_mov_b32 s42, 0x40000")
        A("s_waitcnt lgkmcnt(0)")
        A("s_add_u32 s36, s6, s34"); A("s_addc_u32 s37, s7, 0"); A("s_add_u32 s40, s8, s34"); A("s_addc_u32 s41, s9, 0")
    HK = 128; HV = 144
    kv_srds()
    A("v_lshlrev_b32 v18, 4, v0"); A(f"s_mov_b32 s34, {63*4096}")
    for k in range(4): A(f"buffer_load_dwordx4 v[{HK+4*k}:{HK+4*k+3}], v18, s[36:39], s34 offen offset:{1024*k} {kvflag}")
    def hvload():
        A(f"s_mov_b32 s34, {63*4096}")
        for k in range(4): A(f"buffer_load_dwordx4 v[{HV+4*k}:{HV+4*k+3}], v18, s[40:43], s34 offen offset:{1024*k} {kvflag}")
    if not hvlate: hvload()
    A("s_and_b32 s34, s2, 31"); A("s_lshl_b32 s34, s34, 10"); A("s_lshl_b32 s35, s53, 7"); A("s_add_u32 s34, s34, s35"); A(f"s_add_u32 s34, s34, {WS_QP}")
    A("v_lshrrev_b32 v19, 5, v0"); A("v_mul_u32_u24 v19, 384, v19"); A("v_lshl_add_u32 v19, v0, 2, v19"); A("v_add_u32 v19, s34, v19")
    waitprog(mk[1])
    if marg: stamp(9)
    A("v_and_b32 v44, 15, v0"); A("v_lshlrev_b32 v44, 2, v44"); A("global_load_dword v44, v44, s[30:31] sc1")
    poll([f"buffer_load_dword v{32+u}, v19, s[44:47], {['0','s56','s57','s58'][u]} offen {pld}" for u in range(4)], range(32, 36), 22, sleep=sl[2])
    cnt(2); putrank(mk[1])
    for pat in ("row_ror:8", "row_ror:4", "row_ror:2", "row_ror:1"): A(f"v_add_u32_dpp v44, v44, v44 {pat} {FULL}")
    A("v_readfirstlane_b32 s99, v44")
    A("s_cmp_gt_i32 s99, 0"); A("s_cselect_b32 s99, 1, 0")
    if fixc is not None: A(f"s_mov_b32 s99, {fixc}")
    A("s_getreg_b32 s34, hwreg(HW_REG_XCC_ID, 2, 1)"); A("s_xor_b32 s99, s99, s34"); A("s_lshl_b32 s99, s99, 13")
    A(f"v_mov_b32 v45, {L_NEAR}"); A("v_mov_b32 v44, s99"); A("ds_write_b32 v45, v44")
    unpack(36, 32); unpack(40, 34)
    A("v_pk_add_f32 v[36:37], v[36:37], v[38:39]"); A("v_pk_add_f32 v[40:41], v[40:41], v[42:43]"); A("v_pk_add_f32 v[36:37], v[36:37], v[40:41]")
    A("v_cvt_pk_bf16_f32 v32, v36, v37"); A("v_min_u32 v32, -2, v32")
    A("ds_write_b32 v1, v32")
    stamp(5)
    if hvlate: hvload()
    dierank(mk[1])
    if 'warm2' in skip: warm()
    if stouch:
        A("s_mov_b32 s34, 0x200000"); A("s_mov_b32 s35, 0x400000")
        for p_, o_ in ((12, "0"), (12, "s34"), (12, "s35"), (16, "0"), (16, "s34"), (20, "0"), (20, "s34"), (28, "0")): A(f"s_load_dword s59, s[{p_}:{p_+1}], {o_}")
        A("s_waitcnt lgkmcnt(0)")
    if vtouch:
        A("v_lshlrev_b32 v9, 21, v0")
        if vtouch & 1: A("s_mov_b64 exec, 7"); A("global_load_dword v76, v9, s[12:13]")
        if vtouch & 2: A("s_mov_b64 exec, 3"); A("global_load_dword v76, v9, s[16:17]"); A("global_load_dword v76, v9, s[20:21]")
        if vtouch & 4: A("s_mov_b64 exec, 1"); A(f"global_load_dword v76, v9, s[28:29]")
        A("s_mov_b64 exec, -1")
    Q = 4; P = [8, 9, 10, 11]
    SCALE = hex(f2u(math.log2(math.e) / math.sqrt(128)))
    def qk_ins(base, a, b, pend):
        out = []
        pend = list(pend)
        for d in range(4):
            for k in range(4):
                r = base + 4 * k + d
                out.append(f"v_dot2_f32_bf16 v{P[k]}, v{r}, v{Q}, 0" if d == 0 else f"v_dot2c_f32_bf16 v{P[k]}, v{r}, v{Q+d}")
            out += pend[:2]; pend = pend[2:]
        out2 = [f"v_add_f32_dpp v{a}, v{P[0]}, v{P[0]} row_ror:8 row_mask:0xf bank_mask:0x3",
                f"v_add_f32_dpp v{a}, v{P[1]}, v{P[1]} row_ror:8 row_mask:0xf bank_mask:0xc",
                f"v_add_f32_dpp v{b}, v{P[2]}, v{P[2]} row_ror:8 row_mask:0xf bank_mask:0x3",
                f"v_add_f32_dpp v{b}, v{P[3]}, v{P[3]} row_ror:8 row_mask:0xf bank_mask:0xc"]
        np_ = []
        for pat in ("row_half_mirror", "quad_perm:[1,0,3,2]", "quad_perm:[2,3,0,1]"):
            np_ += [f"v_add_f32_dpp v{a}, v{a}, v{a} {pat} {FULL}", f"v_add_f32_dpp v{b}, v{b}, v{b} {pat} {FULL}"]
        return out, out2, np_
    class Rec:
        def __init__(s): s.l = []
        def __call__(s, t): s.l.append(t)
    def softmax_ins(S, MK, slot):
        nonlocal A
        keep = A; A = Rec()
        n = len(S)
        if n == 2: A(f"v_max_f32 v8, v{S[0]}, v{S[1]}")
        else:
            A(f"v_max3_f32 v8, v{S[0]}, v{S[1]}, v{S[2]}")
            for k in range(3, n - 1, 2): A(f"v_max3_f32 v8, v8, v{S[k]}, v{S[k+1]}")
            A(f"v_max_f32 v8, v8, v{S[n-1]}")
        A(f"s_mov_b32 s34, {SCALE}")
        A(f"v_max_f32_dpp v8, v8, v8 row_ror:8 {FULL}")
        allred_rows("v_max_f32", [8], [9])
        A("v_mul_f32 v8, s34, v8")
        for k in range(n): A(f"v_fma_f32 v{S[k]}, v{S[k]}, s34, -v8")
        for k in range(n): A(f"v_exp_f32 v{S[k]}, v{S[k]}")
        A(f"v_add_f32 v9, v{S[0]}, v{S[1]}")
        for k in range(2, n): A(f"v_add_f32 v9, v9, v{S[k]}")
        diagmask(MK, 10, 11)
        A(f"v_add_f32_dpp v9, v9, v9 row_ror:8 {FULL}")
        allred_rows("v_add_f32", [9], [10])
        slot()
        A("s_mov_b64 exec, 1\nds_write_b64 v10, v[8:9]\ns_mov_b64 exec, -1")
        r = A.l; A = keep
        return r
    def pv_ins(t, p, r, B, MK, ACC0, ACC1):
        pre = [f"v_cvt_pk_bf16_f32 v10, v{p}, v{p}"] + [f"v_and_b32 v{B+m}, v10, v{MK+m}" for m in range(4)]
        c0 = f"v[{ACC0}:{ACC0+3}]" if t else "0"; c1 = f"v[{ACC1}:{ACC1+3}]" if t else "0"
        return pre, [f"v_mfma_f32_16x16x32_bf16 v[{ACC0}:{ACC0+3}], v[{r}:{r+3}], v[{B}:{B+3}], {c0}",
                     f"v_mfma_f32_16x16x32_bf16 v[{ACC1}:{ACC1+3}], v[{r+4}:{r+7}], v[{B}:{B+3}], {c1}"]
    A(f"v_and_b32 v2, 15, v0"); A(f"v_lshlrev_b32 v2, 4, v2"); A(f"v_add_u32 v2, {L_QV}, v2")
    A(f"ds_read_b128 v[{Q}:{Q+3}], v2"); A("s_waitcnt lgkmcnt(0)")
    o1, o2, o3 = qk_ins(HK, 16, 17, [])
    for x_ in o1 + o2 + o3: A(x_)
    HACC = 116
    for x_ in softmax_ins([16, 17], 20, lambda: A(f"v_mov_b32 v10, {L_ML + 56}")): A(x_)
    if hvlate: A("s_waitcnt vmcnt(0)")
    for t in range(2):
        a_, b_ = pv_ins(t, 16 + t, HV + 8 * t, 24 + 4 * t, 20, HACC, HACC + 4)
        for x_ in a_ + b_: A(x_)
    def redaddr(dst, t):
        return [f"v_lshrrev_b32 v{dst}, 4, v0", f"v_and_b32 v{t}, 7, v0", f"v_lshl_add_u32 v{dst}, v{dst}, 3, v{t}", f"v_bfe_u32 v{t}, v0, 3, 1",
                f"v_lshl_add_u32 v{dst}, v{t}, 5, v{dst}", f"v_lshl_add_u32 v{dst}, v{dst}, 4, s34"]
    A(f"s_mov_b32 s34, {L_RED + 7*1024}")
    for x_ in redaddr(16, 17): A(x_)
    for k in range(4): A(f"v_add_f32_dpp v{HACC+k}, v{HACC+4+k}, v{HACC+k} row_ror:8 {FULL}")
    A(f"ds_write_b128 v16, v[{HACC}:{HACC+3}]")
    A("v_lshl_add_u32 v16, v0, 3, s34"); A(f"ds_read_b64 v[{HACC}:{HACC+1}], v16"); A("s_waitcnt lgkmcnt(0)")
    GA = 100; GB = 104; BS = 108; HA = 112
    TB, TU, TG, TR2 = 200, 201, 202, 203
    def dma_prep():
        l1 = newlabel("dp"); l2 = newlabel("dp"); e = newlabel("dp")
        A("v_and_b32 v8, 3, v0"); A("v_bfe_u32 v9, v0, 2, 2"); A("v_lshrrev_b32 v10, 4, v0")
        A("s_mov_b32 s55, 0x20000"); A("s_lshl_b32 s35, s62, 6"); A("s_and_b32 s49, s62, 1")
        A("s_cmp_eq_u32 s63, 0"); A(f"s_cbranch_scc1 {l1}")
        A("s_cmp_eq_u32 s63, 1"); A(f"s_cbranch_scc1 {l2}")
        A("s_mov_b32 s52, s20"); A("s_mov_b32 s53, s21"); A(f"s_mov_b32 s54, {0 if 'w2none' in skip else 1728*1280}"); A("v_mov_b32 v15, 0")
        A(f"s_branch {e}")
        A.label(l2)
        A("s_mov_b32 s52, s16"); A("s_mov_b32 s53, s17"); A(f"s_mov_b32 s54, {0 if 'w1none' in skip else 640*3456}")
        A("v_lshl_add_u32 v15, v9, 3, v10"); A("v_mul_u32_u24 v15, 3456, v15"); A("v_lshl_add_u32 v15, v8, 4, v15"); A("v_add_u32 v15, s35, v15")
        A("s_bfe_u32 s50, s3, 0x10001"); A("s_lshl_b32 s50, s50, 7"); A("s_and_b32 s34, s3, 1"); A("s_lshl_b32 s34, s34, 2"); A("s_add_u32 s50, s50, s34")
        A("s_and_b32 s51, s3, 3"); A("s_lshl_b32 s51, s51, 5"); A("s_add_u32 s51, s51, 512")
        A("s_mul_i32 s50, s50, 3456"); A("s_mul_i32 s51, s51, 3456")
        A(f"s_branch {e}")
        A.label(l1)
        A("s_mov_b32 s52, s12"); A("s_mov_b32 s53, s13"); A(f"s_mov_b32 s54, {4096*1280}")
        A("s_lshr_b32 s50, s3, 1"); A("s_lshl_b32 s50, s50, 3"); A("s_add_u32 s50, s50, s60"); A("s_and_b32 s51, s3, 1")
        A("s_lshl_b32 s34, s50, 1"); A("s_add_u32 s34, s34, s51"); A(f"s_mul_i32 s34, s34, {64*1280}"); A("s_add_u32 s34, s34, s35")
        A("v_lshl_add_u32 v15, v9, 2, v10"); A("v_mul_u32_u24 v15, 2560, v15"); A("v_lshl_add_u32 v15, v8, 4, v15"); A("v_add_u32 v15, s34, v15")
        A("s_lshl_b32 s56, s3, 12"); A("s_lshl_b32 s34, s49, 11"); A("s_add_u32 s56, s56, s34"); A(f"s_add_u32 s56, s56, {L_WT}"); A("s_add_u32 s58, s56, 1024")
        A(f"s_mul_i32 s57, s49, {32*1280}"); A("s_add_u32 s59, s57, 1280")
        A.label(e)
    PHA = f"s_mov_b32 m0, s56\nbuffer_load_dwordx4 v15, s[52:55], s57 offen {tflag} lds"
    PHB = f"s_mov_b32 m0, s58\nbuffer_load_dwordx4 v15, s[52:55], s59 offen {tflag} lds"
    WOD = [PHA, PHB, f"s_xor_b32 m0, s56, 2048\ns_sub_u32 s34, {32*1280}, s57\nbuffer_load_dwordx4 v15, s[52:55], s34 offen {tflag} lds",
           f"s_xor_b32 m0, s58, 2048\ns_sub_u32 s34, {33*1280}, s57\nbuffer_load_dwordx4 v15, s[52:55], s34 offen {tflag} lds"]
    def prep_common():
        A(f"v_and_b32 v{TB}, 3, v0"); A(f"v_bfe_u32 v{TU}, v0, 2, 2"); A(f"v_lshrrev_b32 v{TG}, 4, v0")
        A("s_lshl_b32 s34, s3, 10"); A(f"s_add_u32 s34, s34, {L_RED2}"); A(f"v_mul_u32_u24 v{TR2}, 320, v{TU}"); A(f"v_min_u32 v{TR2}, 704, v{TR2}")
        A(f"v_lshl_add_u32 v{TR2}, v{TG}, 6, v{TR2}"); A(f"v_lshl_add_u32 v{TR2}, v{TB}, 4, v{TR2}"); A(f"v_add_u32 v{TR2}, s34, v{TR2}")
        A("s_movk_i32 s48, 16384")
    def prep_wo():
        A("s_lshr_b32 s49, s3, 1"); A(f"s_lshl_b32 s49, s49, {PG}")
        A("v_and_b32 v210, 7, v0"); A(f"s_mul_i32 s34, s60, {8*OS}"); A("s_add_u32 s34, s34, s49"); A(f"s_add_u32 s34, s34, {WS_LAM}"); A("v_lshrrev_b32 v211, 3, v0"); A(f"v_mul_u32_u24 v205, {OS}, v211"); A("v_add_u32 v204, s34, v205")
        A("s_lshl_b32 s35, s51, 7"); A("s_add_u32 s34, s34, s35"); A(f"s_sub_u32 s34, s34, {WS_LAM - WS_O}")
        A("v_lshl_add_u32 v205, v210, 4, v205"); A("v_add_u32 v205, s34, v205")
        A("s_lshl_b32 s34, s3, 12"); A(f"s_add_u32 s34, s34, {L_WT}")
        A("v_lshrrev_b32 v206, 2, v0"); A("v_lshlrev_b32 v206, 6, v206"); A(f"v_lshl_add_u32 v206, v{TB}, 3, v206"); A("v_add_u32 v206, s34, v206")
        A("s_mul_i32 s34, s3, 1152"); A(f"s_add_u32 s34, s34, {L_TR}")
        A("v_mul_u32_u24 v207, 144, v211"); A("v_lshl_add_u32 v207, v210, 4, v207"); A("v_add_u32 v207, s34, v207")
        A("v_mul_u32_u24 v208, 144, v210"); A(f"v_lshl_add_u32 v208, v{TG}, 4, v208"); A("v_add_u32 v208, s34, v208")
        if maskA:
            A("v_mul_u32_u24 v212, 144, v211"); A("v_add_u32 v212, s34, v212"); A("v_mul_u32_u24 v213, 144, v210"); A("v_add_u32 v213, s34, v213")
        A("v_and_b32 v211, 1, v211"); A(f"v_bfe_u32 v{TR2}, v0, 1, 2"); A(f"v_mul_u32_u24 v{TR2}, 144, v{TR2}"); A("v_and_b32 v214, 1, v0"); A("v_mul_u32_u24 v214, 576, v214")
        A(f"v_lshl_add_u32 v214, v211, 6, v214"); A(f"v_lshl_add_u32 v214, v{TG}, 4, v214"); A(f"s_add_u32 s34, s34, {L_RED2 - L_TR}"); A(f"v_add3_u32 v{TR2}, v{TR2}, v214, s34")
        A(f"v_mov_b32 v210, {L_ZERO}"); A("v_cmp_eq_u32 vcc, 0, v211")
        A("v_cndmask_b32 v209, v208, v210, vcc"); A("v_cndmask_b32 v208, v210, v208, vcc")
    def prep_w1():
        A("v_and_b32 v205, 15, v0"); A("v_lshlrev_b32 v205, 4, v205"); A("s_and_b32 s49, s3, 3")
        A("s_mul_i32 s34, s49, 1280"); A("s_add_u32 s34, s34, s99"); oddcopy(1); A(f"s_add_u32 s34, s34, {WS_P}"); A(f"v_lshl_add_u32 v206, v{TG}, {PG}, v205"); A("v_add_u32 v206, s34, v206")
        A("s_mul_i32 s34, s49, 3840"); A("v_add_u32 v205, s34, v205")
    def prep_w2():
        A("v_bfe_u32 v205, v0, 3, 2"); A("v_lshlrev_b32 v204, 3, v205"); A("v_lshrrev_b32 v205, 5, v0"); A("v_lshl_add_u32 v204, v205, 2, v204")
        A("v_bfe_u32 v205, v0, 1, 2"); A("v_add_u32 v204, v204, v205"); A("v_and_b32 v205, 1, v0")
        A("s_sub_u32 s49, s3, 1")
        A("v_mul_u32_u24 v204, 1280, v204"); A("v_lshl_add_u32 v204, v205, 4, v204"); A("s_lshl_b32 s34, s62, 5"); A(f"s_mul_i32 s35, s49, {256*1280}")
        A("s_add_u32 s34, s34, s35"); A("v_add_u32 v204, s34, v204")
        A("s_lshl_b32 s50, s49, 13"); A(f"s_add_u32 s50, s50, {L_WT}"); A("v_lshl_add_u32 v205, v0, 3, s50")
    def pf_prep(stride, sh, msk, rows, stA, stB, xrows):
        A(f"s_lshr_b32 s34, s62, {sh}"); A("s_lshl_b32 s34, s34, 7"); A(f"s_and_b32 s35, s62, {msk}"); A(f"s_mul_i32 s35, s35, {rows*stride}"); A("s_add_u32 s34, s34, s35")
        if xrows: A(f"s_mul_i32 s35, s60, {xrows*stride}"); A("s_add_u32 s34, s34, s35")
        A("v_lshrrev_b32 v197, 1, v0"); A(f"v_mul_u32_u24 v197, {stride}, v197"); A("v_and_b32 v196, 1, v0"); A("v_lshl_add_u32 v197, v196, 6, v197"); A("v_add_u32 v197, s34, v197")
        A(f"s_mov_b32 s40, {stA*stride}"); A(f"s_mov_b32 s41, {stB*stride}")
    def band_prep(stride, lpA, lpB, ninstr, colA, colB, slotB):
        A("s_cmp_eq_u32 s60, 4")
        A(f"s_cselect_b32 s40, {lpB}, {lpA}"); A(f"s_mov_b32 s41, {65536 // lpA + 1}"); A(f"s_cmov_b32 s41, {65536 // lpB + 1}")
        A(f"s_cselect_b32 s34, {slotB}, 20"); A(f"s_mov_b32 s49, {60 // lpA * stride}"); A(f"s_cmov_b32 s49, {60 // lpB * stride}")
        A("v_min_u32 v196, 59, v0"); A("v_mul_u32_u24 v197, s41, v196"); A("v_lshrrev_b32 v197, 16, v197")
        A("v_mul_u32_u24 v194, s40, v197"); A("v_sub_u32 v196, v196, v194"); A(f"v_mul_u32_u24 v197, {stride}, v197"); A("v_lshl_add_u32 v197, v196, 6, v197")
        A(f"s_mul_i32 s35, s60, {colA[0]}"); A(f"s_add_i32 s35, s35, {colA[1]}"); A("s_cmp_eq_u32 s60, 4"); A(f"s_cselect_b32 s35, {colB}, s35")
        A("s_sub_u32 s34, s61, s34"); A("s_mul_i32 s34, s34, s49"); A(f"s_mul_i32 s34, s34, {ninstr}"); A("s_add_u32 s34, s34, s35"); A("v_add_u32 v197, s34, v197")
        A("s_mov_b32 s40, s49"); A("s_mov_b32 s41, s49")
    N1 = 11 if band & 1 else 10; N2 = 15 if band & 2 else 14
    def pf_issue(n):
        for i in range(n):
            A(f"buffer_load_dword v250, v197, s[52:55], s42 offen {tflag}"); A(f"s_add_u32 s42, s42, {'s41' if i & 1 else 's40'}")
    role_decode()
    dma_prep()
    prep_common()
    A("v_mov_b32 v197, 0"); A("s_mov_b32 s40, 0"); A("s_mov_b32 s41, 0"); A("s_mov_b32 s42, 0")
    if 'rprep' in skip: A("s_branch L_d_none")
    A("s_cmp_eq_u32 s63, 0"); A("s_cbranch_scc1 L_d_wo")
    A("s_cmp_eq_u32 s63, 2"); A("s_cbranch_scc1 L_d_w2")
    A("s_cmp_eq_u32 s63, 3"); A("s_cbranch_scc1 L_d_none")
    prep_w1()
    A("s_lshl_b32 s34, s62, 6"); A("v_lshlrev_b32 v5, 4, v14"); A("v_lshl_add_u32 v5, v12, 2, v5"); A("v_add_u32 v5, s34, v5")
    A("global_load_dword v6, v5, s[18:19]")
    A("v_and_b32 v7, 15, v0"); A("v_lshlrev_b32 v7, 4, v7"); A("v_mul_u32_u24 v8, 1280, v14"); A("v_add_u32 v8, v8, v7")
    A("v_bfe_u32 v9, v0, 3, 1"); A(f"v_lshlrev_b32 v9, {PG}, v9"); A("v_lshl_add_u32 v9, v14, 7, v9"); A("v_and_b32 v10, 7, v0"); A("v_lshl_add_u32 v9, v10, 4, v9"); A(f"v_add_u32 v9, {WS_MF}, v9")
    A(f"s_mov_b32 s57, {2 << PG}")
    A("v_mul_u32_u24 v5, 3840, v14"); A("v_add_u32 v5, v5, v7")
    waitprog(mk[2])
    for k in range(5): A(f"global_load_dwordx4 v[{32+4*k}:{35+4*k}], v8, s[4:5] offset:{256*k}")
    poll([f"buffer_load_dwordx4 v[{52+4*k}:{55+4*k}], v9, s[44:47], {'s57' if (10 + 2*k) & 2 else '0'} offen offset:{512*((10 + 2*k) >> 2)} sc1" for k in range(10)], range(52, 92), 28, sleep=sl[4])
    for k in range(15): A(f"ds_write_b128 v5, v[{32+4*k}:{35+4*k}] offset:{L_XS + 256*k}")
    A("s_waitcnt lgkmcnt(0)")
    A(f"v_lshlrev_b32 v{GA}, 16, v6"); A(f"v_and_b32 v{GA+1}, 0xffff0000, v6")
    if W1T:
        for d in range(40):
            t, e = d >> 1, d & 1
            row = (256*e + 128*((t>>1)&1) + 32*(t>>2) + 4*(t&1)) if t < 16 else (512 + 32*(t-16) + 4*e)
            A(f"s_mov_b32 m0, {L_WT + d*1024}"); A(f"s_mov_b32 s34, {row*3456}")
            if d >= W1T: A(f"s_waitcnt vmcnt({W1T-1})")
            A(f"buffer_load_dwordx4 v15, s[52:55], s34 offen {w1flag} lds")
        A("s_waitcnt vmcnt(0)"); A("s_mov_b32 s54, 0")
    elif 'pf1' in skip: A("s_mov_b32 s54, 0")
    elif band & 1: band_prep(3456, 12, 6, 11, (768, 0), 3072, 20)
    elif pfc1: A("s_mul_i32 s34, s62, 40960"); A("v_lshl_add_u32 v197, v0, 6, s34"); A("s_movk_i32 s40, 4096"); A("s_movk_i32 s41, 4096")
    else: pf_prep(3456, 1, 1, 64, 32, 96, None)
    A("s_branch L_d_none")
    A.label("L_d_w2")
    A("s_lshl_b32 s34, s62, 5"); A("v_lshl_add_u32 v3, v14, 3, s34")
    A("global_load_dwordx2 v[20:21], v3, s[22:23]")
    A(f"v_mul_u32_u24 v{HA}, 1280, v12"); A(f"v_add_u32 v{HA}, v{HA}, v3")
    A(f"global_load_dwordx2 v[22:23], v{HA}, s[4:5]")
    def mfbase(sh, add, w):
        A(f"s_lshr_b32 s34, s62, {sh}"); A(f"s_add_u32 s34, s34, {add}"); A("s_lshr_b32 s35, s34, 2"); A("s_lshl_b32 s35, s35, 9"); A("s_and_b32 s34, s34, 3"); A(f"s_lshl_b32 s34, s34, {PG}")
        A("s_add_u32 s34, s34, s35"); A(f"s_and_b32 s35, s62, {(1 << sh) - 1}"); A(f"s_mul_i32 s35, s35, {w}"); A("s_add_u32 s34, s34, s35"); A(f"s_add_u32 s34, s34, {WS_MF}")
    mfbase(2, 30, 32)
    A("v_lshlrev_b32 v5, 7, v12"); A("v_lshl_add_u32 v5, v14, 3, v5"); A("v_add_u32 v5, s34, v5")
    A("s_waitcnt vmcnt(0)"); unpack(32, 20); unpack(BS, 22)
    waitprog(mk[2])
    poll(["buffer_load_dwordx2 v[24:25], v5, s[44:47], 0 offen sc1"], [24, 25], 28, sleep=sl[4])
    cnt(3)
    unpack(GB, 24)
    for r in range(4): A(f"v_fma_f32 v{BS+r}, v{GB+r}, v{32+r}, v{BS+r}")
    for r in range(4): A(f"v_mul_f32 v{BS+r}, 0x3e800000, v{BS+r}")
    A(f"v_lshl_add_u32 v204, v13, {PG}, v{HA}"); A(f"s_add_u32 s34, s99, {WS_P}"); oddcopy(1, True); A("v_add_u32 v204, s34, v204")
    if band & 2: band_prep(1280, 6, 2, 15, (384, 128 - 5*384), 0, 28)
    elif pfc2: A("s_mul_i32 s34, s62, 55296"); A("v_lshl_add_u32 v197, v0, 6, s34"); A("s_movk_i32 s40, 4096"); A("s_movk_i32 s41, 4096")
    else: pf_prep(1280, 2, 3, 64, 32, 224, None)
    A("s_branch L_d_none")
    A.label("L_d_wo")
    prep_wo()
    A("v_and_b32 v8, 15, v0")
    mfbase(1, 0, 64)
    A("v_lshlrev_b32 v9, 2, v8"); A("v_lshl_add_u32 v9, v14, 7, v9"); A("v_add_u32 v9, s34, v9")
    A("s_lshr_b32 s34, s60, 2"); A("s_lshl_b32 s34, s34, 14"); A("s_and_b32 s35, s60, 3"); A(f"s_lshl_b32 s35, s35, {PG}"); A("s_add_u32 s34, s34, s35")
    A("s_lshl_b32 s35, s62, 6"); A("s_add_u32 s34, s34, s35"); A(f"s_add_u32 s34, s34, {WS_P}")
    A(f"v_mul_u32_u24 v{HA}, 1280, v14"); A(f"v_lshl_add_u32 v{HA}, v8, 2, v{HA}"); A(f"v_add_u32 v{HA}, s34, v{HA}")
    A(f"v_add_u32 v{HA+2}, {C2D}, v{HA}")
    A(f"v_mul_u32_u24 v{HA+1}, 144, v14"); A(f"v_lshl_add_u32 v{HA+1}, v8, 3, v{HA+1}"); A(f"v_add_u32 v{HA+1}, {L_RED2}, v{HA+1}")
    A("s_bfe_u32 s35, s60, 0x10002"); A("s_lshl_b32 s35, s35, 13"); A("s_xor_b32 s101, s99, s35"); A("s_xor_b32 s93, s101, 8192")
    if pfc:
        A("s_mul_i32 s34, s62, 52"); A("s_lshr_b32 s34, s34, 8"); A("s_mul_i32 s35, s34, 5"); A("s_sub_u32 s35, s62, s35")
        A(f"s_mul_i32 s34, s34, {1024*1280}"); A("s_lshl_b32 s35, s35, 15"); A("s_add_u32 s34, s34, s35"); A(f"s_mul_i32 s35, s60, {128*1280}"); A("s_add_u32 s34, s34, s35")
        A("v_lshl_add_u32 v197, v0, 6, s34"); A("s_movk_i32 s40, 4096"); A("s_movk_i32 s41, 4096")
    else: pf_prep(1280, 1, 1, 32, 64, 960, 128)
    waitprog(mk[2])
    poll(["buffer_load_dword v32, v9, s[44:47], 0 offen sc1"], [32], 22, sleep=sl[4])
    cnt(3)
    A(f"v_lshlrev_b32 v{GA}, 16, v32"); A(f"v_and_b32 v{GA+1}, 0xffff0000, v32")
    A.label("L_d_none")
    if pads & 1: touch_(1)
    for n_ in (sorted(set(bm) | set(gm.values())) if bal else ()):
        if pads & 2 and n_ == bm[-1]:
            A("s_cmp_eq_u32 s63, 0"); A("s_cbranch_scc1 L_tw0")
            A("s_cmp_eq_u32 s63, 1"); A("s_cbranch_scc1 L_tw1")
            touch_(2); touch_(3); A("s_branch L_twe")
            A.label("L_tw1"); touch_(5); touch_(6); A("s_branch L_twe")
            A.label("L_tw0"); touch_(4); touch_(7)
            A.label("L_twe")
        if n_ not in mk:
            waitprog(n_)
            if n_ in bm: A("s_waitcnt vmcnt(1)" if (n_ not in gm and n_ not in gm.values()) else "s_waitcnt vmcnt(0)"); putrank(n_); dierank(n_)
    A("v_and_b32 v19, 7, v0"); A("v_lshlrev_b32 v19, 3, v19"); A(f"v_add_u32 v19, {L_ML}, v19")
    poll(["ds_read_b64 v[20:21], v19"], [20, 21], 22, wait="lgkmcnt(0)", sleep=2)
    A(f"v_max_f32_dpp v22, v20, v20 row_half_mirror {FULL}")
    for pat in ("quad_perm:[1,0,3,2]", "quad_perm:[2,3,0,1]"): A(f"v_max_f32_dpp v22, v22, v22 {pat} {FULL}")
    A("v_sub_f32 v20, v20, v22"); A("v_exp_f32 v20, v20"); A("v_mul_f32 v21, v21, v20")
    for pat in ("row_half_mirror", "quad_perm:[1,0,3,2]", "quad_perm:[2,3,0,1]"): A(f"v_add_f32_dpp v21, v21, v21 {pat} {FULL}")
    A("v_rcp_f32 v23, v21"); A("v_log_f32 v21, v21"); A("v_mul_f32 v20, v20, v23"); A("v_add_f32 v21, v21, v22")
    A("v_min_u32 v21, -2, v21")
    FW = [88 + 2 * w for w in range(7)]
    for w in range(7): A(f"v_readlane_b32 s{FW[w]}, v20, {w}")
    A("v_readlane_b32 s89, v20, 7")
    A("s_and_b32 s95, s61, 3"); A(f"s_lshl_b32 s95, s95, {PG}"); A("s_bfe_u32 s35, s2, 0x20005"); A("s_lshl_b32 s35, s35, 1"); A("s_lshr_b32 s91, s2, 7"); A("s_add_u32 s35, s35, s91")
    A("s_getreg_b32 s91, hwreg(HW_REG_XCC_ID, 0, 4)")
    A("v_and_b32 v24, 1, v0"); A("v_cmp_eq_u32 vcc, 0, v24"); A("v_mov_b32 v25, s91"); A("v_cndmask_b32 v25, v25, v21, vcc")
    for r in range(2): A(f"v_mul_f32 v{20+r}, s89, v{HACC+r}")
    A(f"s_mul_i32 s34, s60, {8*OS}"); A(f"s_mul_i32 s35, s35, {OS}"); A("s_add_u32 s34, s34, s35"); A("s_add_u32 s34, s34, s95"); A(f"s_add_u32 s34, s34, {WS_O}")
    A("v_lshl_add_u32 v26, v0, 2, s34")
    A(f"v_lshlrev_b32 v19, 3, v0"); A(f"v_add_u32 v19, {L_RED}, v19"); A(f"v_lshlrev_b32 v18, 4, v0"); A(f"v_add_u32 v18, {L_OC}, v18")
    if warm3: warm(36, 244)
    if pfa:
        A("s_mov_b32 s36, s12"); A("s_mov_b32 s37, s13"); A(f"s_mov_b32 s38, {0 if 'wopf' in skip else 4096*1280}")
        A("s_and_b32 s34, s61, 24"); A("s_add_u32 s34, s34, s60"); A(f"s_mul_i32 s34, s34, {128*1280}"); A("s_and_b32 s35, s61, 7"); A("s_mul_i32 s35, s35, 20480"); A("s_add_u32 s34, s34, s35")
        A("v_lshl_add_u32 v195, v0, 6, s34"); A("s_mov_b32 s34, 0")
    if PF:
        if mkp:
            A(f"v_mov_b32 v28, {L_PROG}")
            poll(["ds_read_b32 v27, v28"], [], 0, wait="lgkmcnt(0)", sleep=1, cmp=f"v_cmp_gt_u32 vcc, {mkp}, v27")
        else: A("s_barrier")
        if pfa:
            if pfd: A(f"s_sleep {pfd}")
            for i in range(0 if pfs else pfa1): A(f"buffer_load_dword v250, v195, s[36:39], s34 offen {tflag}"); A("s_add_u32 s34, s34, 4096")
            if pha:
                A("s_cmp_lg_u32 s63, 0"); A("s_cbranch_scc1 L_nopha")
                for w in range(pha):
                    ro = (1024*(w >> 1) + 64*(w & 1)) * 1280
                    A(f"s_add_u32 m0, s56, {4096*w}"); A(f"s_add_u32 s34, s57, {ro}"); A(f"buffer_load_dwordx4 v15, s[52:55], s34 offen {tflag} lds")
                    A(f"s_add_u32 m0, s58, {4096*w}"); A(f"s_add_u32 s34, s59, {ro}"); A(f"buffer_load_dwordx4 v15, s[52:55], s34 offen {tflag} lds")
                A.label("L_nopha")
            if mallp:
                A("s_cmp_lg_u32 s63, 0"); A("s_cbranch_scc1 L_nomall")
                A("s_mov_b32 s36, s20"); A("s_mov_b32 s37, s21"); A(f"s_mov_b32 s38, {1728*1280}"); A(f"s_mul_i32 s34, s2, {4096*mallp}"); A("v_lshlrev_b32 v195, 6, v0")
                for i in range(mallp): A(f"buffer_load_dword v250, v195, s[36:39], s34 offen {tflag}"); A("s_add_u32 s34, s34, 4096")
                A.label("L_nomall")
            if nbp:
                A("s_cmp_lg_u32 s63, 1" if nb1 else f"s_cmp_lt_u32 s63, {nbr}"); A("s_cbranch_scc1 L_nopf")
                pf_issue(nbp)
                if nbp2:
                    A("s_cmp_lt_u32 s63, 2"); A("s_cbranch_scc1 L_nopf")
                    pf_issue(nbp2)
            if hown:
                A("s_cmp_lg_u32 s63, 0"); A("s_cbranch_scc1 L_nopf")
                for x_ in WOD: A(x_)
        else:
            if PFW: A(f"s_cmp_ge_u32 s63, {int(PFW)}"); A("s_cbranch_scc1 L_nopf")
            pf_issue(PF)
        A.label("L_nopf")
    stamp(6)
    if forceloc == 1: A("s_mov_b32 s97, 0")
    if forceloc == 2: A("s_bfe_u32 s97, s2, 0x10004")
    A("s_cmp_eq_u32 s97, 0")
    if lamE: A(f"buffer_store_dword v25, v26, s[44:47], 0 offen offset:256 {ost}")
    A("s_barrier"); cy(8)
    for w in range(7): A(f"ds_read_b64 v[{32+2*w}:{33+2*w}], v19 offset:{1024*w}")
    if not lamE: A(f"buffer_store_dword v25, v26, s[44:47], 0 offen offset:256 {ost}")
    for w in range(7):
        A(f"s_waitcnt lgkmcnt({6-w})")
        A(f"v_pk_fma_f32 v[20:21], v[{32+2*w}:{33+2*w}], s[{FW[w]}:{FW[w]+1}], v[20:21] op_sel_hi:[1,0,1]")
    A("v_cvt_pk_bf16_f32 v24, v20, v21"); A("v_min_u32 v24, -2, v24")
    A(f"buffer_store_dword v24, v26, s[44:47], 0 offen {ost}"); cy(9)
    A("s_cbranch_scc1 L_ostd")
    A("buffer_store_dword v24, v26, s[44:47], 0 offen sc1"); A("buffer_store_dword v25, v26, s[44:47], 0 offen offset:256 sc1")
    A.label("L_ostd")
    A(f"ds_write_b96 v18, v[24:26]")
    if ocw == True: A("s_waitcnt lgkmcnt(0)")
    for i in range(pfa1, pfa): A(f"s_mov_b32 s34, {4096*i}"); A(f"buffer_load_dword v250, v195, s[36:39], s34 offen {tflag}")
    if PF and PFW:
        A(f"s_cmp_lt_u32 s63, {int(PFW)}"); A("s_cbranch_scc1 L_nopf2")
        pf_issue(PF)
        A.label("L_nopf2")
    if ocw == 2: A("s_waitcnt lgkmcnt(0)")
    A("s_barrier")
    if not ocw: A("s_waitcnt lgkmcnt(0)")
    stamp(7)
    if diag:
        pass
    if 'tail' in skip: A("s_branch L_fin")
    if hown: A("s_cmp_eq_u32 s63, 0"); A("s_cbranch_scc1 L_r_wo3")
    elif early:
        A("s_cmp_lg_u32 s63, 0"); A("s_cbranch_scc1 L_r_nwo")
        for x_ in WOD[:early]: A(x_)
        A("s_branch L_r_wo2")
        A.label("L_r_nwo")
    else: A("s_cmp_eq_u32 s63, 0"); A("s_cbranch_scc1 L_r_wo2")
    if PF: pf_issue(N1 - PF - (nbp if nbr == 1 else 0))
    A("s_cmp_eq_u32 s63, 1"); A("s_cbranch_scc1 L_r_w1")
    if PF: pf_issue(N2 - N1 - (nbp if nbr == 2 else 0) - nbp2 + (nbp if nb1 else 0))
    A("s_cmp_eq_u32 s63, 2"); A("s_cbranch_scc1 L_w2_red")
    if loc: A("s_waitcnt vmcnt(0)"); republish()
    A("s_branch L_fin")
    if pg:
        A.raw(".p2align 12")
        if spad: A.raw(f".fill {spad // 4}, 4, 0xbf800000")
    if calign: A.raw(f".p2align {calign}")
    for i in range(cpad // 4): A.raw("    s_nop 0")
    A.label("L_stream"); A("; ---- stream waves")
    if pcl:
        A("s_cmp_eq_u32 s38, 0"); A("s_cbranch_scc1 L_clear_s")
        A.label("L_stream2")
    NC = 9; NX = 6
    KS = lambda i: 16 + 16 * i
    VS = lambda i: 160 + 16 * i if i < NX else KS(i - NX + 1)
    A("s_sub_u32 s49, s3, 1"); A(f"s_mul_i32 s49, s49, {1024*G}"); A("v_lshl_add_u32 v1, v0, 4, s49")
    A("s_lshr_b32 s98, s2, 7"); A(f"s_mul_i32 s98, s98, {rotk*1024}")
    kv_srds()
    order = [("K", i, k) for i in range(NC) for k in range(4)] + [("V", i, k) for i in range(NC) for k in range(4)]
    if vfirst:
        order.remove(("V", 0, 0)); order.insert(1, ("V", 0, 0))
    if pfs: order.insert(pfs, ("P", 0, 0))
    def tp_w2():
        prep_w2()
        A("s_lshl_b32 s34, s49, 8"); A("s_add_u32 s34, s34, s99"); oddcopy(2); A(f"s_add_u32 s34, s34, {WS_H1}"); A("s_cmp_eq_u32 s49, 6"); A("s_cselect_b32 s35, 1, 3")
        A(f"v_lshlrev_b32 v6, 6, v{TG}"); A(f"v_lshl_add_u32 v6, v{TB}, 4, v6"); A(f"v_add_u32 v6, s34, v6")
        A(f"v_lshl_add_u32 v4, v{TU}, {PG}, v6"); A(f"v_min_u32 v5, s35, v{TU}"); A(f"v_lshl_add_u32 v5, v5, {PG}, v6")
        A(f"v_mov_b32 v7, {L_PSEEN}")
        A("s_lshl_b32 s40, s62, 1"); A(f"s_add_u32 s41, s40, {4 if 'w2half' in skip else 8}"); A(f"s_add_u32 s42, s40, {w2b if w2b < 8 else 2}")
    def tail_prep():
        prep_common()
        A("s_cmp_eq_u32 s63, 0"); A("s_cbranch_scc1 L_tp_wo")
        if near:
            A("s_cmp_lg_u32 s63, 1"); A("s_cbranch_scc1 L_tp_w2")
            prep_w1()
        else:
            A("s_cmp_eq_u32 s63, 1"); A("s_cbranch_scc1 L_tp_w1")
            tp_w2()
            A("s_branch L_tp_e")
            A.label("L_tp_w1")
            prep_w1()
            A("s_branch L_tp_e")
            A.label("L_tp_wo")
            prep_wo()
        A.label("L_tp_e")
    st = dict(n=(NPRE if head else 0), done=-1, soff=None)
    freeK = set()
    Dat = lambda n: (DL if (DL and n >= L0) else D)
    if Dsched: Dat = lambda n: [d_ for n0, d_ in Dsched if n0 <= n][-1]
    from statistics import NormalDist
    def threshlo(k, p):
        sig, tgt = p[0], p[2]
        return sum(1 for r in range(32) if (-sig * NormalDist().inv_cdf((r + 0.5) / 32) - tgt) / 0.12 > k)
    def thresh(k, p):
        sig, tgt = p[:2]
        for r in range(32):
            if (sig * NormalDist().inv_cdf((r + 0.5) / 32) - tgt) / 0.06 > k: return r
        return 32 if (wboost or wk or any(rk) or xr) else 99
    def can_issue():
        if st["n"] >= len(order): return False
        kind, i, k = order[st["n"]]
        return not (kind == "V" and i >= NX and (i - NX + 1) not in freeK)
    def issue():
        kind, i, k = order[st["n"]]
        if st["n"] == NPRE:
            if WD != NPRE: A(f"s_waitcnt vmcnt({NPRE})")
            A("s_barrier")
        if st["n"] < D: A(f"s_waitcnt vmcnt({WD-1})")
        dd = Dat(st["n"])
        n_ = st["n"]
        rdpts = [m + RD for m in bm] if bal else []
        if n_ in rdpts:
            A(f"v_mov_b32 v3, {L_RANK}")
            if wk:
                A("v_mov_b32 v14, 1"); A("s_mov_b64 exec, 1"); A(f"ds_add_rtn_u32 v14, v3, v14 offset:{16 + 4*rdpts.index(n_)}"); A("s_mov_b64 exec, -1")
            A("ds_read_b32 v3, v3")
        th = None
        tlo = 0; d0 = dd
        if bal and n_ > rdpts[0] and dd <= BMAX:
            w_ = max(i_ for i_, r_ in enumerate(rdpts) if r_ < n_)
            th = thresh(n_ - rdpts[w_] - 1, bal[w_])
            if len(bal[w_]) > 2: tlo = threshlo(n_ - rdpts[w_] - 1, bal[w_])
        if th is not None and th < 64: dd += 1
        rb = [r_ for a_, b_, r_ in rboost if a_ <= n_ < b_]
        if rb: dd += 1
        xq = [p_ for a_, b_, p_ in xb if a_ <= n_ < b_]
        if xq: dd += 1
        if st["n"] - dd > st["done"]:
            A(f"s_waitcnt vmcnt({dd-1})"); st["done"] = st["n"] - dd
        if th is not None and th < 64 and th > 0:
            lb = newlabel("bo")
            A(f"s_cmp_ge_u32 s48, {th}"); A(f"s_cbranch_scc1 {lb}"); snap = list(A.hist); A(f"s_waitcnt vmcnt({d0-1})")
            if tlo: A(f"s_cmp_ge_u32 s48, {tlo}"); A(f"s_cbranch_scc1 {lb}"); A(f"s_waitcnt vmcnt({d0-2})")
            A.hist = snap; A.label(lb)
        if xq:
            lb = newlabel("xb")
            A(f"s_lshr_b32 s35, {xq[0]}, s60"); A("s_bitcmp1_b32 s35, 0"); A(f"s_cbranch_scc1 {lb}"); A(f"s_waitcnt vmcnt({dd-2})"); A.hist.pop(); A.label(lb)
        if rb:
            lb = newlabel("rb")
            A(f"s_cmp_ge_u32 s63, {rb[0]}"); A(f"s_cbranch_scc1 {lb}"); A(f"s_waitcnt vmcnt({dd-2})"); A.hist.pop(); A.label(lb)
        if any(a_ <= n_ < b_ for a_, b_ in slowr):
            lb = newlabel("sl")
            A(f"s_cmp_ge_u32 s3, {sloww}"); A(f"s_cbranch_scc1 {lb}"); A(f"s_waitcnt vmcnt({dd-2})"); A.hist.pop(); A.label(lb)
        if any(a_ <= n_ < b_ for a_, b_ in slowr2):
            lb = newlabel("sl")
            A(f"s_cmp_lt_u32 s3, {sloww}"); A(f"s_cbranch_scc1 {lb}"); A(f"s_waitcnt vmcnt({dd-2})"); A.hist.pop(); A.label(lb)
        if n_ in rdpts:
            A("s_waitcnt lgkmcnt(0)"); A("v_readfirstlane_b32 s48, v3")
            if wk:
                A("v_readfirstlane_b32 s35, v14"); A(f"s_mul_i32 s35, s35, {wk}"); A("s_add_u32 s48, s48, s35"); A(f"s_max_u32 s48, s48, {3*wk}"); A(f"s_sub_u32 s48, s48, {3*wk}")
            if wboost and n_ == rdpts[0]:
                A("s_cmp_ge_u32 s3, 4"); A(f"s_cselect_b32 s34, {wboost}, 0"); A("s_add_u32 s48, s48, s34")
        if kind == "P":
            A("s_mov_b32 s36, s12"); A("s_mov_b32 s37, s13"); A(f"s_mov_b32 s38, {4096*1280}")
            A("s_and_b32 s35, s61, 24"); A("s_add_u32 s35, s35, s60"); A(f"s_mul_i32 s35, s35, {128*1280}"); A("s_and_b32 s49, s61, 7"); A("s_mul_i32 s49, s49, 20480"); A("s_add_u32 s35, s35, s49")
            A("s_mul_i32 s49, s3, 2944"); A("s_add_u32 s35, s35, s49"); A("s_sub_u32 s35, s35, 2944"); A("v_lshlrev_b32 v14, 6, v0")
            A("s_mov_b32 exec_hi, 0x3fff"); A(f"buffer_load_dword v14, v14, s[36:39], s35 offen {tflag}"); A("s_mov_b32 exec_hi, -1")
        elif kind == "A": A(PHA)
        elif kind == "B": A(PHB)
        else:
            nn = 4*i + k
            if nn % G == 0 and st["n"]:
                A(f"s_addk_i32 s98, {7168*G}")
                if (nn // G * 7 * G) % 252 in (0, 252 - rotk): A(f"s_cmp_eq_u32 s98, {252*1024}"); A("s_cselect_b32 s98, 0, s98")
            r = (KS(i) if kind == "K" else VS(i)) + 4 * k
            A(f"buffer_load_dwordx4 v[{r}:{r+3}], v1, {'s[36:39]' if kind == 'K' else 's[40:43]'}, s98 offen offset:{1024*(nn % G)} {kvflag}")
        st["n"] += 1
        if st["n"] in mk or st["n"] == mkf or (bal and (st["n"] in bm or st["n"] in gm.values())): A(f"v_mov_b32 v3, {st['n']}"); A(f"v_mov_b32 v14, {L_PROG}"); A("s_mov_b64 exec, 1"); A("ds_write_b32 v14, v3"); A("s_mov_b64 exec, -1")
        if st["n"] == len(order):
            if PF and not mkp: A("s_barrier")
            tail_prep()
        if mkp and st["n"] == mkp: A(f"v_mov_b32 v3, {mkp}"); A(f"v_mov_b32 v14, {L_PROG}"); A("ds_write_b32 v14, v3")
        if st["n"] in tl: stamp([5, 6, 12, 13, 14, 15][tl.index(st["n"])])
    def need(items):
        idx = max(order.index(x_) for x_ in items)
        while st["n"] <= idx: issue()
        if idx > st["done"]:
            A(f"s_waitcnt vmcnt({st['n'] - 1 - idx})"); st["done"] = idx
    while st["n"] < POS:
        issue()
        if st["n"] == 8:
            A(f"s_add_u32 s44, s32, {WB}"); A("s_addc_u32 s45, s33, 0")
            role_decode(); dma_prep(); st["soff"] = None
            A(f"v_and_b32 v2, 15, v0"); A(f"v_lshlrev_b32 v2, 4, v2"); A(f"v_add_u32 v2, {L_QV}, v2")
    stamp(1)
    A(f"v_mov_b32 v14, {L_NEAR}")
    poll([f"ds_read_b128 v[{Q}:{Q+3}], v2", "ds_read_b32 v8, v14"], range(Q, Q + 4), 3, wait="lgkmcnt(0)", sleep=2)
    A("v_readfirstlane_b32 s99, v8")
    stamp(2)
    S = [12, 13] + [KS(0) + k for k in range(16)]
    MK = KS(8); ACC0 = MK + 4; ACC1 = MK + 8; B0 = KS(7)
    prog = []
    pend = []
    for i in range(NC):
        o1, o2, pend = qk_ins(KS(i), S[2*i], S[2*i+1], pend)
        prog.append(("need", [("K", i, 3)])); prog += o1; prog.append(("free", i)); prog += o2
    prog += pend
    def mlslot():
        A("s_lshl_b32 s34, s3, 3"); A(f"s_add_u32 s34, s34, {L_ML - 8}"); A("v_mov_b32 v10, s34")
    prog += softmax_ins(S, MK, mlslot)
    prog.append(("stamp", 3))
    prog += ["s_lshl_b32 s34, s3, 10", f"s_add_u32 s34, s34, {L_RED - 1024}"] + redaddr(2, 11)
    for t in range(2 * NC):
        a_, b_ = pv_ins(t, S[t], VS(t >> 1) + 8 * (t & 1), B0 + 4 * (t & 1), MK, ACC0, ACC1)
        prog += a_; prog.append(("pv", [("V", t >> 1, 2 * (t & 1)), ("V", t >> 1, 2 * (t & 1) + 1)])); prog += b_
    since = GAP
    for ix_, x_ in enumerate(prog):
        if pads & 1 and ix_ == split:
            snap = list(A.hist); A("s_branch L_s2"); A.raw(".p2align 12"); padhere(1); A.label("L_s2"); A.hist = snap
        if isinstance(x_, tuple):
            if x_[0] == "free": freeK.add(x_[1])
            elif x_[0] == "stamp": stamp(x_[1])
            else:
                idx = max(order.index(y) for y in x_[1])
                while can_issue() and st["n"] <= idx + Dat(st["n"]) + (1 if bal and Dat(st["n"]) <= BMAX else 0): issue(); since = 0
                need(x_[1])
            continue
        if since >= GAP and can_issue(): issue(); since = 0
        A(x_); since += 1
    assert st["n"] == len(order)
    for k in range(4): A(f"v_add_f32_dpp v{ACC0+k}, v{ACC1+k}, v{ACC0+k} row_ror:8 {FULL}")
    A(f"ds_write_b128 v2, v[{ACC0}:{ACC0+3}]")
    A("s_waitcnt lgkmcnt(0)")
    stamp(4)
    A("s_barrier")
    if 'tail' in skip: A("s_barrier"); A("s_branch L_fin")
    A("s_cmp_eq_u32 s63, 0"); A("s_cbranch_scc1 L_t_wo")
    A("s_cmp_eq_u32 s63, 2"); A("s_cbranch_scc1 L_t_w2")
    A("s_cmp_eq_u32 s63, 3"); A("s_cbranch_scc1 L_fin")
    def role_w1():
        A("s_barrier")
        stamp(7)
        A.label("L_r_w1"); A("; ---- tail: LN + w1 + gelu")
        WF = 32
        MK = 16; B1 = 52; BQ = 60; DX = 68; DC = 80; DS = 116; DD = 128; LA = 140
        A("s_cmp_lt_u32 s3, 4"); A("s_cbranch_scc1 L_w1_ln")
        A("s_and_b32 s49, s3, 3"); A("s_lshl_b32 s42, s49, 11"); A(f"s_add_u32 s42, s42, {L_WT}")
        def one(i):
            for e in range(2):
                A(f"s_add_u32 m0, s42, {8192*i + 1024*e}")
                if i < 4: A(f"s_add_u32 s34, s50, {(32*i + 256*e)*3456}")
                else: A(f"s_add_u32 s34, s51, {4*e*3456}")
                A(f"buffer_load_dwordx4 v15, s[52:55], s34 offen {tflag} lds")
        if not W1T:
            A("s_bitcmp1_b32 s62, 0"); A(f"s_cbranch_scc1 L_rot1")
            for i in (0, 1, 4, 2, 3): one(i)
            A(f"s_branch L_rot2")
            A.label("L_rot1")
            for i in (2, 3, 4, 0, 1): one(i)
            A.label("L_rot2")
        A("v_lshrrev_b32 v3, 2, v0"); A("v_lshlrev_b32 v3, 6, v3"); A(f"v_lshl_add_u32 v3, v{TB}, 3, v3"); A("v_add_u32 v3, s42, v3")
        A("s_lshl_b32 s35, s49, 6"); A(f"s_add_u32 s35, s35, {L_H2}"); A(f"v_mul_u32_u24 v4, 1344, v{TB}"); A(f"v_lshl_add_u32 v4, v{TG}, 4, v4"); A("v_add_u32 v4, s35, v4")
        A("s_lshl_b32 s35, s49, 10"); A("s_sub_u32 s35, s35, 4096"); A(f"v_add_u32 v5, s35, v{TR2}")
        if lin:
            assert barW
            A(f"v_and_b32 v6, 1, v{TU}"); A(f"v_mul_u32_u24 v6, {4*1344}, v6"); A("v_add_u32 v6, v6, v4"); A(f"v_subrev_u32 v6, {L_H2 - L_CS}, v6")
            A(f"v_subrev_u32 v7, {L_RED2 - L_RED}, v5")
        if barE is not None:
            if barE < 10: A(f"s_waitcnt vmcnt({barE})")
            A("s_barrier"); A("s_waitcnt vmcnt(0)")
        else:
            A("s_waitcnt vmcnt(0)")
            if barW: A("s_barrier")
        for i in range(5):
            if i == 3: A("s_waitcnt lgkmcnt(4)")
            for tau in range(2):
                w = WF + 8*i + 4*tau
                A(f"ds_read_b64_tr_b16 v[{w}:{w+1}], v3 offset:{8192*i + 32*tau}")
                A(f"ds_read_b64_tr_b16 v[{w+2}:{w+3}], v3 offset:{8192*i + 1024 + 32*tau}")
        A("s_waitcnt lgkmcnt(0)")
        stamp(8)
        def gemm(src, dst):
            for i in range(5): A(f"ds_read_b128 v[{LA+4*i}:{LA+4*i+3}], v{src} offset:{256*i}")
            mf = lambda i, tau: f"v_mfma_f32_16x16x32_bf16 v[{20+4*tau}:{23+4*tau}], v[{WF+8*i+4*tau}:{WF+8*i+4*tau+3}], v[{LA+4*i}:{LA+4*i+3}], " + (f"v[{20+4*tau}:{23+4*tau}]" if i else "0")
            if gord:
                for i in range(5): A(f"s_waitcnt lgkmcnt({4-i})"); A(mf(i, 0))
                for i in range(5): A(mf(i, 1))
                A(f"ds_write_b128 v{dst}, v[20:23]"); A(f"ds_write_b128 v{dst}, v[24:27] offset:1024")
            else:
                for i in range(5):
                    A(f"s_waitcnt lgkmcnt({4-i})")
                    for tau in range(2): A(mf(i, tau))
                A(f"ds_write_b128 v{dst}, v[20:23]"); A(f"ds_write_b128 v{dst}, v[24:27] offset:1024")
            A("s_waitcnt lgkmcnt(0)")
        if lin: gemm(6, 7)
        if gprio: A("s_setprio 3")
        A("s_barrier"); cy(3)
        gemm(4, 5); cy(5)
        A("s_barrier")
        A("s_branch L_fin")
        if pads & 2: padhere(6)
        A.label("L_w1_ln")
        if gprio: A("s_setprio 1")
        for k in range(15): A(f"ds_read_b128 v[{LA+4*k}:{LA+4*k+3}], v205 offset:{L_XS + 256*k}")
        diagmask(MK, 8, 9)
        A("v_bfe_u32 v8, v0, 3, 1"); A("v_cmp_eq_u32 vcc, 0, v8")
        for m in range(4):
            A(f"v_cndmask_b32 v{20+m}, 0, v{MK+m}, vcc"); A(f"v_xor_b32 v{24+m}, v{20+m}, v{MK+m}")
        for m in range(8):
            A(f"v_and_b32 v{B1+m}, 0x3f803f80, v{20+m}"); A(f"v_and_b32 v{BQ+m}, 0x3e803e80, v{20+m}")
        A("s_waitcnt lgkmcnt(0)")
        for (dst, src, c0) in ((DX, LA, "0"), (DS, LA + 20, "0"), (DC, LA + 40, "1.0")):
            for k in range(5):
                d = f"v[{dst+4*(k>>1)}:{dst+4*(k>>1)+3}]"
                A(f"v_mfma_f32_16x16x32_bf16 {d}, v[{src+4*k}:{src+4*k+3}], v[{BQ+4*(k&1)}:{BQ+4*(k&1)+3}], {d if k & 1 else c0}")
        A("s_mul_i32 s34, s3, 1344"); A(f"s_add_u32 s34, s34, {L_H2}"); A("v_lshl_add_u32 v7, v0, 4, s34")
        A(f"v_lshlrev_b32 v8, 6, v{TG}"); A(f"v_lshl_add_u32 v8, v{TB}, 4, v8"); A(f"v_and_b32 v9, 1, v{TU}"); A("v_lshl_add_u32 v8, v9, 3, v8"); A("v_add_u32 v8, s34, v8")
        A("v_bfe_u32 v9, v0, 3, 1"); A(f"v_mul_u32_u24 v9, 6144, v9"); A("v_sub_u32 v8, v8, v9")
        A("v_lshrrev_b32 v9, 5, v0"); A("v_lshlrev_b32 v9, 10, v9"); A(f"v_and_b32 v6, 1, v{TG}"); A("v_lshl_add_u32 v9, v6, 7, v9")
        A("v_bfe_u32 v6, v0, 1, 1"); A("v_lshl_add_u32 v9, v6, 6, v9"); A(f"v_lshl_add_u32 v9, v{TU}, 4, v9")
        A("v_and_b32 v6, 1, v0"); A("v_lshl_add_u32 v9, v6, 3, v9"); A(f"v_add_u32 v9, {L_RED2}, v9")
        A("s_lshr_b32 s34, s62, 3"); A("s_lshl_b32 s34, s34, 8"); A("s_and_b32 s49, s62, 3"); A(f"s_lshl_b32 s49, s49, {PG}"); A("s_add_u32 s34, s34, s49")
        A("s_bfe_u32 s49, s62, 0x10002"); A("s_lshl_b32 s49, s49, 14"); A("s_add_u32 s34, s34, s49")
        A(f"s_add_u32 s34, s34, {WS_H1}"); A("v_lshl_add_u32 v5, v0, 2, s34"); A(f"v_add_u32 v4, {C2D}, v5")
        A("s_bfe_u32 s49, s60, 0x10002"); A("s_lshl_b32 s49, s49, 13"); A("s_xor_b32 s53, s99, s49"); A("s_xor_b32 s52, s53, 8192")
        if lin:
            A(f"v_subrev_u32 v10, {L_H2 - L_CS}, v7"); A(f"v_subrev_u32 v11, {L_H2 - L_CS}, v8")
            for k in range(6): A(f"v_cvt_pk_bf16_f32 v{32+k}, v{DS+2*k}, v{DS+2*k+1}")
            A("s_mov_b32 exec_lo, 0x00ff00ff"); A("s_mov_b32 exec_hi, 0x00ff00ff")
            A(f"ds_write_b64 v11, v[36:37] offset:{1024 + 4*1344}")
            A("s_mov_b64 exec, -1")
            A(f"ds_write_b128 v10, v[32:35] offset:{4*1344}")
            for k in range(6): A(f"v_cvt_pk_bf16_f32 v{20+k}, v{DC+2*k}, v{DC+2*k+1}")
            A("ds_write_b128 v10, v[20:23]"); A("ds_write_b64 v11, v[24:25] offset:1024")
            for k in range(3): unpack(DC + 4*k, 20 + 2*k)
            A(f"v_subrev_u32 v11, {L_RED2 - L_RED}, v9")
            A("s_lshl_b32 s34, s3, 3"); A(f"s_add_u32 s34, s34, {L_STAT}"); A("v_mov_b32 v12, s34")
            A(f"v_lshlrev_b32 v13, 3, v{TU}"); A(f"v_add_u32 v13, {L_STAT}, v13"); A("s_mov_b32 s54, 0"); A("s_brev_b32 s55, 1")
            A("s_waitcnt lgkmcnt(0)")
        if canB:
            for r_ in range(LA, LA + 40): A(f"v_mov_b32 v{r_}, -1")
        if barW: A("s_barrier")
        if 'polls' in skip or 'pollB' in skip: A("s_barrier"); A("s_barrier"); A("s_branch L_fin")
        if dB: A(f"s_sleep {dB}")
        loads = []; mm = []
        for k in range(5):
            for hh in range(2):
                r = LA + 8*k + 4*hh
                loads.append(f"buffer_load_dwordx4 v[{r}:{r+3}], v206, s[44:47], {'s48' if hh else '0'} offen offset:{256*k} sc1")
                d = f"v[{DD+4*(k>>1)}:{DD+4*(k>>1)+3}]"; c = d if (k & 1 or hh) else f"v[{DX+4*(k>>1)}:{DX+4*(k>>1)+3}]"
                mm.append(f"v_mfma_f32_16x16x32_bf16 {d}, v[{r}:{r+3}], v[{B1+4*(k&1)}:{B1+4*(k&1)+3}], {c}")
        if not maskB:
            poll(loads, range(LA, LA + 40), 28, extra=mm)
        else:
            A("s_mov_b32 s35, 0"); A("s_mov_b64 s[40:41], -1"); A("s_mov_b64 s[42:43], -1")
            if canB:
                A(f"s_mov_b64 s[36:37], {-canF}"); A(f"s_mov_b64 s[50:51], {-canF}"); A("s_mov_b32 s56, 0x00010001"); A("s_mov_b32 s57, 0x00010001")
            ACT = ("s[36:37]", "s[50:51]")
            A.label("L_pb")
            for hh in range(2):
                if canB:
                    A(f"s_or_b64 s[58:59], {ACT[hh]}, s[56:57]"); A(f"s_and_b64 exec, s[58:59], s[{40+2*hh}:{41+2*hh}]"); A(f"s_cbranch_execz L_pbs{hh}")
                    A(loads[2*cank + hh])
                    A(f"s_and_b64 exec, {ACT[hh]}, s[{40+2*hh}:{41+2*hh}]"); A(f"s_cbranch_execz L_pbs{hh}")
                    for k in range(5):
                        if k != cank: A(loads[2*k + hh])
                else:
                    A(f"s_mov_b64 exec, s[{40+2*hh}:{41+2*hh}]"); A(f"s_cbranch_execz L_pbs{hh}")
                    for k in range(5): A(loads[2*k + hh])
                A.label(f"L_pbs{hh}")
            A("s_mov_b64 exec, -1"); A("s_add_u32 s35, s35, 1")
            A("s_waitcnt vmcnt(0)")
            c0 = maxtree(28, [LA + 8*k + r for k in range(5) for r in range(4)]); c1 = maxtree(29, [LA + 8*k + 4 + r for k in range(5) for r in range(4)])
            for i_, (x_, y_) in enumerate(zip(c0, c1)):
                if specB: A(mm[i_])
                A(x_); A(y_)
            A("v_cmp_eq_u32 s[40:41], -1, v28"); A("v_cmp_eq_u32 s[42:43], -1, v29")
            if not specB: A(mm[0])
            A("s_or_b64 vcc, s[40:41], s[42:43]"); A("s_cbranch_scc0 L_pbd")
            snap = list(A.hist)
            if loc: timeout_hook(TMO)
            if canB:
                A(f"v_cmp_ne_u32 s[36:37], -1, v{LA + 8*cank}"); A(f"v_cmp_ne_u32 s[50:51], -1, v{LA + 8*cank + 4}")
                A("s_and_b64 s[36:37], s[36:37], s[56:57]"); A("s_and_b64 s[50:51], s[50:51], s[56:57]")
                if canM:
                    A("s_bcnt1_i32_b64 s34, s[36:37]"); A("s_bcnt1_i32_b64 s49, s[50:51]"); A("s_add_u32 s34, s34, s49"); A(f"s_cmp_ge_u32 s34, {canM}")
                    A("s_cselect_b64 s[36:37], s[56:57], s[36:37]"); A("s_cselect_b64 s[50:51], s[56:57], s[50:51]")
                for r_ in (36, 37, 50, 51): A(f"s_mul_i32 s{r_}, s{r_}, 0xffff")
            if slB:
                A("s_bcnt1_i32_b64 s34, s[40:41]"); A("s_bcnt1_i32_b64 s49, s[42:43]"); A("s_add_u32 s34, s34, s49"); A(f"s_cmp_le_u32 s34, {thB}"); A("s_cbranch_scc1 L_pbn")
                A(f"s_sleep {slB}")
                A.label("L_pbn")
            A(f"s_cmp_lt_u32 s35, {spin}"); A("s_cbranch_scc1 L_pb")
            A.label("L_pbd"); A.hist = snap
            if not specB:
                for x_ in mm[1:]: A(x_)
        stamp(9); cy(1)
        if lin:
            for k in range(4): A(f"v_pk_mul_f32 v[{32+2*k}:{33+2*k}], v[{DD+2*k}:{DD+2*k+1}], v[{DC+2*k}:{DC+2*k+1}]")
            for k in range(4): A(f"v_cvt_pk_bf16_f32 v{24+k}, v{32+2*k}, v{33+2*k}")
            A("ds_write_b128 v7, v[24:27]")
            for k in range(4, 6): A(f"v_pk_mul_f32 v[{32+2*k}:{33+2*k}], v[{DD+2*k}:{DD+2*k+1}], v[{DC+2*k}:{DC+2*k+1}]")
            for k in range(4, 6): A(f"v_cvt_pk_bf16_f32 v{24+k}, v{32+2*k}, v{33+2*k}")
            A("ds_write_b64 v8, v[28:29] offset:1024")
        sums = [f"v_pk_add_f32 v[20:21], v[{DD}:{DD+1}], v[{DD+2}:{DD+3}]", f"v_pk_mul_f32 v[22:23], v[{DD}:{DD+1}], v[{DD}:{DD+1}]"]
        for k in range(1, 6):
            if k < 5: sums.append(f"v_pk_add_f32 v[20:21], v[20:21], v[{DD+2*k+2}:{DD+2*k+3}]")
            sums.append(f"v_pk_fma_f32 v[22:23], v[{DD+2*k}:{DD+2*k+1}], v[{DD+2*k}:{DD+2*k+1}], v[22:23]")
        sums += ["v_add_f32 v20, v20, v21", "v_add_f32 v21, v22, v23"]
        for x_ in sums[:nsum]: A(x_)
        if lin:
            A("s_waitcnt lgkmcnt(0)"); cy(2)
            A("s_barrier"); cy(3)
        for x_ in sums[nsum:]: A(x_)
        for pat in ("row_ror:8", "row_ror:4", "row_ror:2", "row_ror:1"):
            A(f"v_add_f32_dpp v20, v20, v20 {pat} {FULL}"); A(f"v_add_f32_dpp v21, v21, v21 {pat} {FULL}")
        if lin:
            for pat in ("row_bcast:15 row_mask:0xa", "row_bcast:31 row_mask:0xc"):
                A(f"v_add_f32_dpp v20, v20, v20 {pat} bank_mask:0xf"); A(f"v_add_f32_dpp v21, v21, v21 {pat} bank_mask:0xf")
        else: allred_rows("v_add_f32", [20, 21], [22, 23])
        ln_scalars(20, 21, 22)
        K0 = -2 * 0.7978845608028654 * math.log2(math.e)
        G = f"v[{GA}:{GA+1}]"
        if lin:
            A("s_mov_b64 exec, s[54:55]"); A("ds_write_b64 v12, v[20:21]"); A("s_mov_b64 exec, -1")
            A("s_cmp_lg_u32 s3, 0"); A("s_cbranch_scc1 L_w1_x")
            for k in range(4):
                A(f"ds_read_b64 v[{32+2*k}:{33+2*k}], v11 offset:{2048*k}"); A(f"ds_read_b64 v[{40+2*k}:{41+2*k}], v11 offset:{2048*k + 320}")
            A(f"s_mov_b32 s34, {hex(f2u(K0 * 0.044715))}"); A(f"v_mov_b32 v10, {hex(f2u(K0))}")
            A("s_waitcnt lgkmcnt(8)"); cy(5)
            A("s_barrier"); cy(6)
            A("ds_read_b64 v[28:29], v13")
            for k in range(4): A(f"ds_read_b64 v[{20+2*k}:{21+2*k}], v9 offset:{2048*k}")
            A("s_waitcnt lgkmcnt(5)")
            for k in range(4):
                A(f"v_pk_add_f32 {G}, {G}, v[{40+2*k}:{41+2*k}]")
                if k: A(f"v_pk_add_f32 v[32:33], v[32:33], v[{32+2*k}:{33+2*k}]")
            A("s_waitcnt lgkmcnt(4)"); A(f"v_pk_fma_f32 {G}, v[32:33], v[28:29], {G} op_sel:[0,1,0] op_sel_hi:[1,1,1]")
            for k in range(4):
                A(f"s_waitcnt lgkmcnt({3-k})"); A(f"v_pk_fma_f32 {G}, v[{20+2*k}:{21+2*k}], v[28:29], {G} op_sel_hi:[1,0,1]")
        else:
            for k in range(6): A(f"v_pk_fma_f32 v[{DD+2*k}:{DD+2*k+1}], v[{DD+2*k}:{DD+2*k+1}], v[20:21], v[20:21] op_sel:[0,0,1] op_sel_hi:[1,0,1]")
            for k in range(6): A(f"v_pk_fma_f32 v[{DD+2*k}:{DD+2*k+1}], v[{DD+2*k}:{DD+2*k+1}], v[{DC+2*k}:{DC+2*k+1}], v[{DS+2*k}:{DS+2*k+1}]")
            for k in range(6): A(f"v_cvt_pk_bf16_f32 v{20+k}, v{DD+2*k}, v{DD+2*k+1}")
            A("ds_write_b128 v7, v[20:23]")
            A("ds_write_b64 v8, v[24:25] offset:1024")
            A("s_waitcnt lgkmcnt(0)")
            A("s_barrier")
            A("s_barrier")
            A("s_cmp_lg_u32 s3, 0"); A("s_cbranch_scc1 L_fin")
            for k in range(4): A(f"ds_read_b64 v[{20+2*k}:{21+2*k}], v9 offset:{2048*k}")
            A(f"s_mov_b32 s34, {hex(f2u(K0 * 0.044715))}"); A(f"v_mov_b32 v10, {hex(f2u(K0))}")
            for k in range(4):
                A(f"s_waitcnt lgkmcnt({3-k})"); A(f"v_pk_add_f32 {G}, {G}, v[{20+2*k}:{21+2*k}]")
        A(f"v_pk_mul_f32 v[20:21], {G}, {G}")
        A("v_fma_f32 v20, v20, s34, v10"); A("v_fma_f32 v21, v21, s34, v10")
        A(f"v_pk_mul_f32 v[20:21], v[20:21], {G}")
        A("v_exp_f32 v20, v20"); A("v_exp_f32 v21, v21"); A("v_add_f32 v20, 1.0, v20"); A("v_add_f32 v21, 1.0, v21")
        A("v_rcp_f32 v20, v20"); A("v_rcp_f32 v21, v21")
        A(f"v_pk_mul_f32 v[20:21], v[20:21], {G}")
        A("v_cvt_pk_bf16_f32 v20, v20, v21"); A("v_min_u32 v20, -2, v20")
        A("buffer_store_dword v20, v5, s[44:47], s52 offen sc1")
        if c2 & 2: A("buffer_store_dword v20, v4, s[44:47], s52 offen sc1")
        A("buffer_store_dword v20, v5, s[44:47], s53 offen sc1")
        if c2 & 2: A("buffer_store_dword v20, v4, s[44:47], s53 offen sc1")
        cy(11)
        stamp(10)
        A("s_branch L_ampe" if amp else "s_branch L_fin")
        A.label("L_w1_x")
        A("s_waitcnt lgkmcnt(0)"); cy(5)
        A("s_barrier")
        A("s_branch L_fin")
    if pg: A("s_branch L_t_w1")
    else: role_w1()
    if near: A.label("L_tp_w2"); tp_w2(); A("s_branch L_tp_e")
    if pads & 2: padhere(2)
    A.label("L_t_w2"); A("; ---- tail: w2 + residual")
    A("s_barrier")
    stamp(7)
    A.label("L_w2_dma")
    A("s_and_b32 s34, s40, 7"); A("s_lshl_b32 s35, s34, 10"); A("s_add_u32 m0, s50, s35"); A(f"s_mul_i32 s34, s34, {32*1280}")
    A(f"buffer_load_dwordx4 v204, s[52:55], s34 offen {tflag} lds")
    A("s_add_u32 s40, s40, 1"); A("s_cmp_lg_u32 s40, s42"); A("s_cbranch_scc1 L_w2_nw")
    if w2wait: A("s_waitcnt vmcnt(0)")
    if w2f == 2 and w2b < 8: A("s_barrier")
    A.label("L_w2_nw")
    A("s_cmp_lt_u32 s40, s41"); A("s_cbranch_scc1 L_w2_dma")
    def w2rd(n):
        A(f"s_waitcnt vmcnt({n})")
        for t in range(8):
            if t == 4: A("s_waitcnt lgkmcnt(0)")
            A(f"ds_read_b64_tr_b16 v[{32+4*t}:{33+4*t}], v205 offset:{1024*t}"); A(f"ds_read_b64_tr_b16 v[{34+4*t}:{35+4*t}], v205 offset:{1024*t+512}")
        A("s_waitcnt lgkmcnt(0)")
        stamp(8)
    mm = [f"v_mfma_f32_16x16x32_bf16 v[{80+4*(t&3)}:{83+4*(t&3)}], v[{32+4*t}:{35+4*t}], v[{64+4*(t>>2)}:{67+4*(t>>2)}], " + (f"v[{80+4*(t&3)}:{83+4*(t&3)}]" if t >= 4 else "0") for t in range(8)]
    lC = ["buffer_load_dwordx4 v[64:67], v4, s[44:47], 0 offen sc1", "buffer_load_dwordx4 v[68:71], v5, s[44:47], s48 offen sc1"]
    if w2f == 2:
        if w2b == 8: A("s_barrier")
        for x_ in lC: A(x_)
        w2rd(2)
        A("s_waitcnt vmcnt(0)")
        for x_ in maxtree(28, range(64, 72)): A(x_)
        A("v_cmp_eq_u32 vcc, -1, v28"); A("s_cbranch_vccz L_w2_got")
        poll(["ds_read_b32 v8, v7"], [], 0, wait="lgkmcnt(0)", sleep=1, cmp="v_cmp_eq_u32 vcc, 0, v8")
        poll(lC, range(64, 72), 28, tmo=TMO, sleep=slC)
        A.label("L_w2_got")
    elif w2f:
        A("ds_read_b32 v8, v7"); A("s_waitcnt lgkmcnt(0)"); A("v_cmp_eq_u32 vcc, 0, v8"); A("s_cbranch_vccnz L_w2_slow")
        A("s_mov_b32 s35, 0")
        for x_ in lC: A(x_)
        w2rd(2)
        A("s_branch L_w2_mid")
        A.label("L_w2_slow")
        w2rd(0)
        poll(["ds_read_b32 v8, v7"], [], 0, wait="lgkmcnt(0)", sleep=1, cmp="v_cmp_eq_u32 vcc, 0, v8")
        poll(lC + ["L_w2_mid:"], range(64, 72), 28, tmo=TMO, sleep=slC)
    else:
        w2rd(0)
        if 'polls' in skip or 'pollB' in skip: A("s_branch L_fin")
        if dC: A("s_barrier"); A(f"s_sleep {dC}")
        poll(lC, range(64, 72), 28, extra=mm if specC else None, tmo=TMO, sleep=slC)
    cy(1)
    dp = lambda u: [f"v_add_f32_dpp v{80+r}, v{80+4*u+r}, v{80+r} row_shl:{4*u} row_mask:0xf bank_mask:0x1" for r in range(4)]
    for t in (0, 4, 1, 5, 2, 6, 3, 7): A(mm[t])
    stamp(9)
    for u in range(1, 4):
        for x_ in dp(u): A(x_)
    A(f"ds_write_b128 v{TR2}, v[80:83]")
    A("s_waitcnt lgkmcnt(0)"); cy(2)
    A("s_barrier")
    A("s_branch L_fin")
    if pads & 2: padhere(3)
    A.label("L_w2_red")
    if w2f == 2: A("s_barrier")
    if 'polls' in skip or 'pollB' in skip: A("s_branch L_fin")
    poll(["buffer_load_dwordx2 v[20:21], v204, s[44:47], 0 offen sc1", "buffer_load_dwordx2 v[22:23], v204, s[44:47], s48 offen sc1"], range(20, 24), 28, sleep=slR, tmo=TMO // 3)
    if w2f: A(f"v_mov_b32 v7, {L_PSEEN}"); A("ds_write_b32 v7, v7")
    elif dC: A("s_barrier")
    unpack(44, 20); unpack(48, 22)
    for r in range(4): A(f"v_add_f32 v{BS+r}, v{BS+r}, v{44+r}")
    for r in range(4): A(f"v_add_f32 v{BS+r}, v{BS+r}, v{48+r}")
    A("s_mov_b32 s36, s28"); A("s_mov_b32 s37, s29"); A("s_movk_i32 s38, 5120")
    for pat in ("row_ror:4", "row_ror:8"):
        for r in range(4): A(f"v_add_f32_dpp v{BS+r}, v{BS+r}, v{BS+r} {pat} {FULL}")
    for r in range(4): A(f"v_mov_b32_dpp v{BS+r}, v{GB+r} quad_perm:[0,1,2,3] row_mask:0xf bank_mask:0x2")
    A(f"ds_write_b128 v{TR2}, v[{BS}:{BS+3}]")
    A("v_and_b32 v6, 31, v0"); A("v_lshlrev_b32 v6, 3, v6"); A(f"v_add_u32 v6, {L_RED2}, v6")
    A(f"ds_read_b64 v[{BS}:{BS+1}], v6"); A(f"ds_read_b64 v[{GB}:{GB+1}], v6 offset:320")
    A(f"v_bfe_u32 v{HA}, v0, 1, 2"); A(f"v_mul_u32_u24 v{HA}, 1280, v{HA}"); A("v_bfe_u32 v7, v0, 3, 2"); A(f"v_lshl_add_u32 v{HA}, v7, 3, v{HA}")
    A("v_and_b32 v7, 1, v0"); A(f"v_lshl_add_u32 v{HA}, v7, 2, v{HA}"); A("v_lshrrev_b32 v7, 5, v0"); A(f"v_lshl_add_u32 v{HA}, v7, 28, v{HA}")
    A("s_lshl_b32 s34, s62, 5")
    A("s_waitcnt lgkmcnt(0)")
    stamp(8)
    A("s_barrier"); cy(3)
    for w in range(7): A(f"ds_read_b64 v[{64+2*w}:{65+2*w}], v6 offset:{1024*(w+1)}")
    for w in range(7):
        A(f"s_waitcnt lgkmcnt({6-w})")
        A(f"v_pk_fma_f32 v[{BS}:{BS+1}], v[{64+2*w}:{65+2*w}], v[{GB}:{GB+1}], v[{BS}:{BS+1}]")
    A(f"v_cvt_pk_bf16_f32 v20, v{BS}, v{BS+1}")
    A(f"buffer_store_dword v20, v{HA}, s[36:39], s34 offen {outflag}"); cy(11)
    stamp(10)
    if amp:
        A.label("L_ampe")
        A(f"s_cmp_lg_u32 s2, {ampwg}"); A("s_cbranch_scc1 L_fin")
        if amps is not None:
            A("v_and_b32 v4, 7, v0"); A("v_lshlrev_b32 v4, 2, v4"); A("global_load_dword v4, v4, s[30:31] offset:192 sc1"); A("s_waitcnt vmcnt(0)")
            A("v_mov_b32 v5, v4")
            for pat in ("row_half_mirror", "quad_perm:[1,0,3,2]", "quad_perm:[2,3,0,1]"):
                A(f"v_min_u32_dpp v5, v5, v5 {pat} {FULL}")
                if amps < 0: A(f"v_max_u32_dpp v4, v4, v4 {pat} {FULL}")
            A(f"v_readlane_b32 s{64+2*amp[0]}, v4, {max(amps, 0)}"); A("v_readfirstlane_b32 s64, v5"); A("s_nop 3")
        A("s_memrealtime s[96:97]"); A(f"s_sub_u32 s34, s{64+2*amp[0]}, s64"); A(f"s_mul_i32 s34, s34, {amp[1]}"); A("s_min_u32 s34, s34, 100000")
        A("s_waitcnt lgkmcnt(0)"); A("s_add_u32 s34, s34, s96")
        A.label("L_amp")
        A("s_memrealtime s[96:97]"); A("s_waitcnt lgkmcnt(0)"); A("s_sub_u32 s35, s96, s34"); A("s_cmp_lt_i32 s35, 0"); A("s_cbranch_scc1 L_amp")
    A("s_branch L_fin")
    if near: A.label("L_tp_wo"); prep_wo(); A("s_branch L_tp_e")
    if pads & 2: padhere(4)
    A.label("L_t_wo"); A("; ---- tail: wo")
    for x_ in WOD[:early]: A(x_)
    A("s_barrier")
    stamp(7)
    A.label("L_r_wo2")
    if pha and pha < 8:
        A(f"s_cmp_lt_u32 s3, {pha}"); A("s_cbranch_scc1 L_r_wo4")
        for x_ in WOD[:2]: A(x_)
        A.label("L_r_wo4")
    for x_ in WOD[(2 if pha else early):(2 if 'wohalf' in skip else 0 if 'wodma' in skip else 4)]: A(x_)
    A.label("L_r_wo3")
    if 'polls' in skip: A("s_branch L_fin")
    def wofirst():
        A("s_waitcnt vmcnt(2)")
        if pha: A("s_barrier")
        stamp(8)
        for u in range(2):
            for tau in range(2):
                w = 32 + 8*u + 4*tau
                A(f"ds_read_b64_tr_b16 v[{w}:{w+1}], v206 offset:{2048*u + 32*tau}"); A(f"ds_read_b64_tr_b16 v[{w+2}:{w+3}], v206 offset:{2048*u + 1024 + 32*tau}")
    lA = ["buffer_load_dwordx4 v[64:67], v205, s[44:47], 0 offen sc1", "buffer_load_dwordx2 v[26:27], v204, s[44:47], 0 offen sc1"]
    wcalc = [f"v_sub_f32_dpp v26, v26, v26 quad_perm:[1,0,3,2] {FULL}", "v_exp_f32 v26, v26", "v_add_f32 v26, 1.0, v26", "v_rcp_f32 v26, v26"]
    if not maskA:
        poll(lA, [64, 65, 66, 67, 26], 28, extra=["ds_write_b128 v207, v[64:67]"], first=wofirst)
        stamp(9)
        for u in range(2):
            for tau in range(2): A(f"ds_read_b128 v[{68+8*u+4*tau}:{71+8*u+4*tau}], v{208+tau} offset:{64*u}")
        for x_ in wcalc: A(x_)
    else:
        A("s_mov_b32 s35, 0"); A("s_mov_b32 s48, 0")
        for x_ in lA: A(x_)
        wofirst()
        A("s_branch L_pam")
        if pads & 2: padhere(7)
        A.label("L_pa")
        for x_ in lA: A(x_)
        A.label("L_pam")
        A("s_add_u32 s35, s35, 1")
        A("s_waitcnt vmcnt(0)")
        A("ds_write_b128 v207, v[64:67]"); A("ds_write_b32 v212, v26 offset:128")
        for x_ in maxtree(28, [64, 65, 66, 67, 26]): A(x_)
        A("v_cmp_eq_u32 vcc, -1, v28"); A("s_cbranch_vccz L_pad")
        if loc: timeout_hook(TMO)
        A("s_mov_b64 exec, vcc")
        if slA and thA:
            A("s_bcnt1_i32_b64 s34, vcc"); A(f"s_cmp_le_u32 s34, {thA}"); A("s_cbranch_scc1 L_pan"); A(f"s_sleep {slA}"); A.label("L_pan")
        elif slA: A(f"s_sleep {slA}")
        A(f"s_cmp_lt_u32 s35, {spin}"); A("s_cbranch_scc1 L_pa")
        A.label("L_pad")
        A("s_mov_b64 exec, -1"); cy(1)
        stamp(9)
        A("ds_read_b32 v26, v213 offset:128")
        for u in range(2):
            for tau in range(2): A(f"ds_read_b128 v[{68+8*u+4*tau}:{71+8*u+4*tau}], v{208+tau} offset:{64*u}")
    for k in range(4):
        A(f"s_waitcnt lgkmcnt({3-k})")
        A(f"v_mfma_f32_16x16x32_bf16 v[20:23], v[{32+4*k}:{35+4*k}], v[{68+4*k}:{71+4*k}], {'v[20:23]' if k else 0}")
    if maskA:
        for x_ in wcalc: A(x_)
    A("v_sub_f32 v30, 1.0, v26")
    for hh in range(2): A(f"v_pk_mul_f32 v[{48+2*hh}:{49+2*hh}], v[{20+2*hh}:{21+2*hh}], v[26:27] op_sel_hi:[1,0]")
    for r in range(4): A(f"v_fmac_f32_dpp v{48+r}, v{20+r}, v30 quad_perm:[1,0,3,2] {FULL}")
    A(f"ds_write_b128 v{TR2}, v[48:51]")
    A("s_cmp_lg_u32 s3, 0")
    A("s_waitcnt lgkmcnt(0)"); cy(2)
    A("s_barrier"); cy(3)
    A("s_cbranch_scc1 L_wo_x")
    for w in range(8): A(f"ds_read_b64 v[{64+2*w}:{65+2*w}], v{HA+1} offset:{1152*w}")
    for w in range(1, 8):
        A(f"s_waitcnt lgkmcnt({7-w})")
        A(f"v_pk_add_f32 v[64:65], v[64:65], v[{64+2*w}:{65+2*w}]")
    A(f"v_pk_mul_f32 v[64:65], v[64:65], v[{GA}:{GA+1}]")
    A("v_cvt_pk_bf16_f32 v28, v64, v65"); A("v_min_u32 v28, -2, v28")
    A(f"buffer_store_dword v28, v{HA}, s[44:47], s101 offen sc1")
    if c2 & 1: A(f"buffer_store_dword v28, v{HA+2}, s[44:47], s101 offen sc1")
    A(f"buffer_store_dword v28, v{HA}, s[44:47], s93 offen sc1")
    if c2 & 1: A(f"buffer_store_dword v28, v{HA+2}, s[44:47], s93 offen sc1")
    cy(11)
    stamp(10)
    A.label("L_wo_x")
    if loc:
        A("s_getreg_b32 s34, hwreg(HW_REG_XCC_ID, 0, 4)"); A("v_cmp_ne_u32 vcc, s34, v27"); A("s_cbranch_vccz L_fin")
        republish()
    if pg:
        A("s_branch L_fin")
        A.label("L_pgend")
        A.raw(".p2align 12")
        if pads & 2: padhere(5)
        A.label("L_t_w1")
        role_w1()
    A.label("L_fin")
    if diag and dbgout:
        A("s_cmp_gt_u32 s3, 1"); A("s_cbranch_scc1 L_exit")
        A("s_cmp_lt_u32 s61, 20"); A("s_cbranch_scc1 L_exit")
        A("s_cmp_ge_u32 s61, 22"); A("s_cbranch_scc1 L_exit")
        A("s_mov_b64 exec, 1"); A("s_lshl_b32 s34, s3, 5"); A("s_add_u32 s34, s34, 12"); A("s_mul_i32 s34, s34, s3"); A("v_mov_b32 v1, s34")
        for i in range(1, 11):
            if i == 5: A("s_cmp_eq_u32 s3, 1"); A("s_cbranch_scc1 L_exit")
            A(f"s_sub_u32 s35, s{64+2*i}, s64"); A(f"s_cmp_eq_u32 s{64+2*i}, 0"); A("s_cselect_b32 s35, 0, s35")
            A(f"v_mov_b32 v{2+i}, s35")
            A(f"global_atomic_umax v1, v{2+i}, s[30:31] offset:{4*i}")
    elif diag:
        A("s_waitcnt vmcnt(0)")
        stamp(11)
        for i in range(3): A("s_sleep 127")
        A("s_waitcnt lgkmcnt(0)")
        A("s_lshl_b32 s34, s2, 3"); A("s_add_u32 s34, s34, s3"); A("s_lshl_b32 s34, s34, 7")
        A("s_add_u32 s32, s32, 0x20000000"); A("s_addc_u32 s33, s33, 0")
        A("s_mov_b64 exec, 1"); A("v_mov_b32 v1, s34")
        for i in range(16):
            A(f"v_mov_b32 v{2+2*i}, s{64+2*i}"); A(f"v_mov_b32 v{3+2*i}, s{65+2*i}")
            A(f"global_store_dwordx2 v1, v[{2+2*i}:{3+2*i}], s[32:33] offset:{8*i}")
    A.label("L_exit")
    A("s_endpgm")
    A.label("L_codeend")
    A.raw('.section .rodata,"a"'); A.raw(".p2align 6"); A.raw(f".amdhsa_kernel {NAME}_kernel")
    for l in ("next_free_vgpr 256", "next_free_sgpr 102", "accum_offset 256", "group_segment_fixed_size 0", "kernarg_size 120",
              "user_sgpr_count 2", "user_sgpr_kernarg_segment_ptr 1", "system_sgpr_workgroup_id_x 1", "float_denorm_mode_32 3"):
        A.raw("  .amdhsa_" + l)
    A.raw(".end_amdhsa_kernel")
    if endp and not diag: return A.text().replace("s_branch L_fin\n", "s_endpgm\n")
    return A.text()

_gen1 = gen
def gen(**kw):
    if not kw.get("pg", True) or kw.get("spad") is not None or kw.get("pads", 0) & 1: return _gen1(**kw)
    import subprocess, tempfile
    with tempfile.TemporaryDirectory() as d:
        open(d + "/a.s", "w").write(_gen1(**kw))
        subprocess.run(["clang", "-x", "assembler", "-target", "amdgcn-amd-amdhsa", "-mcpu=gfx950", "-c", d + "/a.s", "-o", d + "/a.o"], check=True)
        sym = subprocess.run(["llvm-objdump", "-t", d + "/a.o"], capture_output=True, text=True).stdout
    ad = {l.split()[-1]: int(l.split()[0], 16) for l in sym.splitlines() if l.split() and l.split()[-1] in ("L_stream", "L_pgend")}
    return _gen1(spad=(-(ad["L_pgend"] - ad["L_stream"])) % 4096 // 64 * 64, **kw)

if __name__ == "__main__":
    import argparse
    ap = argparse.ArgumentParser(); ap.add_argument("out"); ap.add_argument("kw", nargs="*")
    a = ap.parse_args()
    kw = {}
    for x in a.kw:
        k, v = x.split("=")
        try: v = eval(v)
        except Exception: pass
        kw[k] = v
    open(a.out, "w").write(gen(**kw))
```
